```python
import torch

def _softmax(x, axis=-1):
    return torch.softmax(x, dim=axis)
def _gelu(x):
    return torch.nn.functional.gelu(x, approximate="tanh")
def _silu(x):
    return torch.nn.functional.silu(x)
def _sigmoid(x):
    return torch.sigmoid(x)
def _layernorm(x, axis=-1, eps=1e-5):
    m = x.mean(dim=axis, keepdim=True)
    v = x.var(dim=axis, keepdim=True, unbiased=False)
    return (x - m) / torch.sqrt(v + eps)
def _scatter_add(tgt, idx, src, axis=0):
    return tgt.clone().index_add_(axis, idx, src)
def _segment_sum(src, seg, n):
    out = torch.zeros((n,) + src.shape[1:], dtype=src.dtype)
    return out.index_add_(0, seg, src)
def _pad(x, pw):
    flat = tuple(v for pair in reversed(pw) for v in pair)
    return torch.nn.functional.pad(x, flat)

kernel_name = 'gated_mix__linear_attn_block__mha_block__prompt'

def setup_inputs():

    _w = (lambda a: (lambda t: t.to(torch.bfloat16) if t.is_floating_point() else t)(torch.as_tensor(a)))
    def _A_setup():
        B, S, D = 1, 2048, 576
        return {
            "x": _w((lambda *s: torch.randn(*s, dtype=torch.bfloat16) * 0.05)(B, S, D)),
            "wqkv": _w((lambda *s: torch.randn(*s, dtype=torch.bfloat16) * 0.8)(D, 3 * D)),
            "wo": _w((lambda *s: torch.randn(*s, dtype=torch.bfloat16) * 0.2)(D, D)),
        }
    _A_in = _A_setup()

    def _B_setup():
        B, S, D, H = 1, 2048, 576, 32
        return {
            "x": _w((lambda *s: torch.randn(*s, dtype=torch.bfloat16) * 0.05)(B, S, D)),
            "wqkv": _w((lambda *s: torch.randn(*s, dtype=torch.bfloat16) * 0.8)(D, 3 * D)),
            "wo": _w((lambda *s: torch.randn(*s, dtype=torch.bfloat16) * 0.05)(D, D)),
        }
    _B_in = _B_setup()

    return {
        "A_x": _A_in["x"],
        "A_wqkv": _A_in["wqkv"],
        "A_wo": _A_in["wo"],
        "B_x": _B_in["x"],
        "B_wqkv": _B_in["wqkv"],
        "B_wo": _B_in["wo"],
        "gate_w": _w((lambda *s: torch.randn(*s, dtype=torch.bfloat16) * 0.05)(576) * 16.0),
    }

def reference(A_x, A_wqkv, A_wo, B_x, B_wqkv, B_wo, gate_w):
    def _A_ref(x, wqkv, wo):
        B, S, D = x.shape
        H = 32; Dh = D // H
        qkv = (lambda x, *d: x.permute(*d))((x @ wqkv).reshape(B, S, 3, H, Dh), 2, 0, 3, 1, 4)
        q, k, v = qkv[0], qkv[1], qkv[2]
        phi = lambda t: torch.where(t > 0, t + 1, torch.exp(t)) + 1e-6
        pq, pk = phi(q), phi(k)
        kv = torch.einsum("bhsd,bhse->bhde", pk, v)
        z = torch.einsum("bhsd->bhd", pk)
        num = torch.einsum("bhqd,bhde->bhqe", pq, kv)
        den = torch.einsum("bhqd,bhd->bhq", pq, z)[..., None] + 1e-6
        o = num / den
        return (lambda x, *d: x.permute(*d))(o, 0, 2, 1, 3).reshape(B, S, D) @ wo

    def _B_ref(x, wqkv, wo):
        B, S, D = x.shape
        H = 32
        Dh = D // H
        qkv = (lambda x, *d: x.permute(*d))((x @ wqkv).reshape(B, S, 3, H, Dh), 2, 0, 3, 1, 4)
        q, k, v = qkv[0], qkv[1], qkv[2]
        scores = torch.einsum("bhqd,bhkd->bhqk", q, k) * (Dh ** -0.5)
        p = _softmax(scores, axis=-1)
        o = torch.einsum("bhqk,bhkd->bhqd", p, v)
        return (lambda x, *d: x.permute(*d))(o, 0, 2, 1, 3).reshape(B, S, D) @ wo

    x = A_x
    g = _sigmoid((x * gate_w).sum(-1, keepdims=True))
    a = _A_ref(x, A_wqkv, A_wo)
    b = _B_ref(x, B_wqkv, B_wo)
    return g * a + (1 - g) * b
```

```python
class Asm:
    def __init__(self):
        self.L = []
        self.vm = []
        self.lg = []
        self._uid = 0
    def __call__(self, s):
        for ln in s.split("\n"):
            ln = ln.strip()
            if ln: self.L.append("  " + ln if not ln.endswith(":") else ln)
    def c(self, s): self.L.append("  ; " + s)
    def label(self, n): self.L.append(n + ":")
    def uid(self, p="L"):
        self._uid += 1; return f"{p}_{self._uid}"
    def vmem(self, s, tag=None):
        self(s); self.vm.append(tag)
    def ds(self, s, tag=None):
        self(s); self.lg.append(tag)
    def wait_vm(self, *tags):
        idx = [i for i,t in enumerate(self.vm) if t in tags]
        if not idx: return
        last = max(idx); n = len(self.vm) - 1 - last
        assert n <= 63
        self(f"s_waitcnt vmcnt({n})")
        self.vm = self.vm[last+1:]
    def wait_lg(self, *tags):
        idx = [i for i,t in enumerate(self.lg) if t in tags]
        if not idx: return
        last = max(idx); n = len(self.lg) - 1 - last
        assert n <= 15, n
        self(f"s_waitcnt lgkmcnt({n})")
        self.lg = self.lg[last+1:]
    def wait_all(self):
        self("s_waitcnt vmcnt(0) lgkmcnt(0)"); self.vm=[]; self.lg=[]
    def wait_vm_all(self):
        self("s_waitcnt vmcnt(0)"); self.vm=[]
    def wait_lg_all(self):
        self("s_waitcnt lgkmcnt(0)"); self.lg=[]
    def text(self): return "\n".join(self.L) + "\n"
def v(a, n=1): return f"v{a}" if n==1 else f"v[{a}:{a+n-1}]"
def s(a, n=1): return f"s{a}" if n==1 else f"s[{a}:{a+n-1}]"
def kernel_desc(name, vgpr, sgpr=96, accum=None):
    accum = accum or ((vgpr+3)//4*4)
    return f""".section .rodata,"a"
.p2align 6
.amdhsa_kernel {name}
  .amdhsa_next_free_vgpr {vgpr}
  .amdhsa_next_free_sgpr {sgpr}
  .amdhsa_accum_offset {accum}
  .amdhsa_group_segment_fixed_size 0
  .amdhsa_kernarg_size 80
  .amdhsa_user_sgpr_count 2
  .amdhsa_user_sgpr_kernarg_segment_ptr 1
  .amdhsa_system_sgpr_workgroup_id_x 1
.end_amdhsa_kernel
.text
"""
def kernel_head(name):
    return f""".globl {name}
.p2align 8
.type {name},@function
{name}:
"""
```

```python
from asmlib import *
from model import *
SLOT = 49152
GT = 3*SLOT
LDS_K1 = GT + 1152 + 128
HS_KVB = 8*CH
HS_V = 128*640
LOG2E = 0x3fb8aa3b
QSC = int(np.float32(QSCALE).view(np.uint32))
def gen_k1(name="k1_kernel", stamps=False):
    a = Asm()
    vLane, vT0, vT1, vT2, vT3, vT4, vT5 = 1,2,3,4,5,6,7
    vWG = 8
    vXG = 10
    vWR = [12,13,14,15]
    vXR = [16,17,18,19]
    vGA = 20
    vGacc = 21
    vL16 = 22
    vTok = 23
    vHf = 24
    vXF = [28, 32]
    vGF = [36, 40]
    vWF = [44, 60]
    vD = 76
    vE = 140
    NV = 160
    sX=8; sWS=12; sWA=16; sWB=18; sGW=20
    sR, sJt, sW, sRt, sCh, sT32 = 22,23,24,25,26,27
    sT0,sT1,sT2,sT3,sT4 = 28,29,30,31,32
    sSlotW, sXoff, sC, sM = 33, 34, 35, 36
    sJ8, sIsV = 37, 38
    sKind, sHead, sBase = 39, 40, 41
    a(f"""
    s_cmp_ge_u32 s2, 256
    s_cbranch_scc1 {name}_end
    s_load_dwordx2 s[4:5], s[0:1], 0
    s_load_dwordx2 s[{sWA}:{sWA+1}], s[0:1], 8
    s_load_dwordx2 s[{sWB}:{sWB+1}], s[0:1], 32
    s_load_dwordx2 s[{sGW}:{sGW+1}], s[0:1], 48
    s_load_dwordx2 s[6:7], s[0:1], 72
    s_and_b32 s{sT0}, s2, 7
    s_lshr_b32 s{sT1}, s2, 3
    s_and_b32 s{sR}, s{sT0}, 1
    s_lshl_b32 s{sR}, s{sR}, 3
    s_and_b32 s{sT2}, s{sT1}, 7
    s_add_u32 s{sR}, s{sR}, s{sT2}
    s_lshr_b32 s{sJt}, s{sT0}, 1
    s_lshl_b32 s{sJt}, s{sJt}, 2
    s_lshr_b32 s{sT2}, s{sT1}, 3
    s_add_u32 s{sJt}, s{sJt}, s{sT2}
    s_and_b32 s{sJ8}, s{sJt}, 7
    s_lshr_b32 s{sIsV}, s{sJt}, 3
    v_lshrrev_b32 v{vT0}, 6, v0
    v_and_b32 v{vLane}, 63, v0
    v_readfirstlane_b32 s{sW}, v{vT0}
    v_lshlrev_b32 v{vL16}, 4, v{vLane}
    v_and_b32 v{vTok}, 31, v{vLane}
    v_lshrrev_b32 v{vHf}, 5, v{vLane}
    s_and_b32 s{sRt}, s{sW}, 3
    s_lshr_b32 s{sCh}, s{sW}, 2
    s_lshl_b32 s{sT32}, s{sR}, 2
    s_add_u32 s{sT32}, s{sT32}, s{sRt}
    """)
    a(f"""
    s_lshl_b32 s{sT0}, s{sW}, 1
    v_add_u32 v{vT0}, s{sT0}, v{vHf}
    v_and_b32 v{vT1}, 3, v{vT0}
    v_lshlrev_b32 v{vT1}, 2, v{vT1}
    v_xor_b32 v{vT1}, v{vTok}, v{vT1}         ; c
    v_min_u32 v{vT1}, 29, v{vT1}              ; clamp
    ; c<24: cc = 36*(c>>2) + 8*(c&3) + (c&2 ? 4:0)
    v_lshrrev_b32 v{vT2}, 2, v{vT1}
    v_mul_u32_u24 v{vT2}, 36, v{vT2}
    v_and_b32 v{vT3}, 3, v{vT1}
    v_lshlrev_b32 v{vT4}, 3, v{vT3}
    v_add_u32 v{vT2}, v{vT2}, v{vT4}
    v_and_b32 v{vT3}, 2, v{vT3}
    v_lshlrev_b32 v{vT3}, 1, v{vT3}
    v_add_u32 v{vT2}, v{vT2}, v{vT3}
    v_subrev_u32 v{vT3}, 24, v{vT1}
    v_mul_u32_u24 v{vT3}, 36, v{vT3}
    v_add_u32 v{vT3}, 16, v{vT3}
    v_lshlrev_b32 v{vT4}, 2, v{vHf}
    v_sub_u32 v{vT3}, v{vT3}, v{vT4}
    v_cmp_gt_u32 vcc, 24, v{vT1}
    s_mul_i32 s{sT0}, s{sJ8}, 216
    s_nop 0
    v_cndmask_b32 v{vT2}, v{vT3}, v{vT2}, vcc
    v_add_u32 v{vT2}, s{sT0}, v{vT2}          ; L = 216*j8 + cc
    """)
    a(f"""
    s_cmp_eq_u32 s{sIsV}, 0
    s_cselect_b32 s{sT0}, 576, 0
    s_add_u32 s{sT0}, s{sT0}, 576            ; threshold
    s_cmp_eq_u32 s{sIsV}, 0
    s_cselect_b32 s{sT1}, 0, 1152
    s_cselect_b32 s{sT2}, 1152, 0
    v_add_u32 v{vT3}, s{sT1}, v{vT2}
    v_subrev_u32 v{vT4}, s{sT2}, v{vT2}
    v_cmp_gt_u32 vcc, s{sT0}, v{vT2}
    s_nop 1
    v_cndmask_b32 v{vT3}, v{vT4}, v{vT3}, vcc     ; col
    v_lshlrev_b32 v{vT3}, 1, v{vT3}
    v_mul_u32_u24 v{vT4}, 3456, v{vT0}
    v_add_u32 v{vT3}, v{vT3}, v{vT4}
    s_waitcnt lgkmcnt(0)
    v_mov_b32 v{vT4}, s{sWA}
    v_mov_b32 v{vT5}, s{sWB}
    v_cndmask_b32 v{vWG}, v{vT4}, v{vT5}, vcc
    v_mov_b32 v{vT4}, s{sWA+1}
    v_mov_b32 v{vT5}, s{sWB+1}
    v_cndmask_b32 v{vWG+1}, v{vT4}, v{vT5}, vcc
    v_add_co_u32 v{vWG}, vcc, v{vWG}, v{vT3}
    s_nop 1
    v_addc_co_u32 v{vWG+1}, vcc, 0, v{vWG+1}, vcc
    s_mov_b32 s8, s4
    s_mov_b32 s9, s5
    s_mov_b32 s10, {S*D*2}
    s_mov_b32 s11, 0x00020000
    s_mov_b32 s12, s6
    s_mov_b32 s13, s7
    s_mov_b32 s14, {WS_END}
    s_mov_b32 s15, 0x00020000
    """)
    a(f"""
    v_lshrrev_b32 v{vT0}, 3, v{vLane}
    s_lshl_b32 s{sT0}, s{sW}, 3
    v_add_u32 v{vT0}, s{sT0}, v{vT0}
    v_lshrrev_b32 v{vT1}, 1, v{vT0}
    v_and_b32 v{vT1}, 7, v{vT1}
    v_and_b32 v{vT2}, 7, v{vLane}
    v_xor_b32 v{vT1}, v{vT1}, v{vT2}
    v_lshlrev_b32 v{vT1}, 4, v{vT1}
    s_lshl_b32 s{sT0}, s{sR}, 7
    v_add_u32 v{vT0}, s{sT0}, v{vT0}
    v_mul_u32_u24 v{vT0}, 1152, v{vT0}
    v_add_u32 v{vXG}, v{vT0}, v{vT1}
    s_lshl_b32 s{sM}, s{sW}, 10      ; w*1024
    s_mov_b32 s{sSlotW}, 0
    s_mov_b32 s{sXoff}, 0
    """)
    def dma_chunk():
        a(f"s_add_u32 s{sT0}, s{sSlotW}, s{sM}")
        for m in range(4):
            a(f"s_add_u32 m0, s{sT0}, {m*8192}")
            a(f"s_nop 0")
            a(f"global_load_lds_dwordx4 {v(vWG,2)}, off")
            a(f"v_add_co_u32 v{vWG}, vcc, 0xd800, v{vWG}")
            a(f"s_nop 1")
            a(f"v_addc_co_u32 v{vWG+1}, vcc, 0, v{vWG+1}, vcc")
        a(f"s_add_u32 m0, s{sT0}, 32768")
        a(f"s_add_u32 s{sT1}, s{sXoff}, 73728")
        a(f"buffer_load_dwordx4 v{vXG}, s[8:11], s{sXoff} offen lds")
        a(f"s_add_u32 m0, s{sT0}, {32768+8192}")
        a(f"s_add_u32 s{sXoff}, s{sXoff}, 128")
        a(f"buffer_load_dwordx4 v{vXG}, s[8:11], s{sT1} offen lds")
        a(f"s_add_u32 s{sSlotW}, s{sSlotW}, {SLOT}")
        a(f"s_cmp_eq_u32 s{sSlotW}, {3*SLOT}")
        a(f"s_cselect_b32 s{sSlotW}, 0, s{sSlotW}")
    a(f"""
    s_mov_b32 s16, s{sGW}
    """) if False else None
    sG = 44
    a(f"""
    s_mov_b32 s44, s{sGW}
    s_mov_b32 s45, s{sGW+1}
    s_mov_b32 s46, 1152
    s_mov_b32 s47, 0x00020000
    s_cmp_gt_u32 s{sW}, 1
    s_cbranch_scc1 {name}_nog
    s_add_u32 m0, s{sM}, {GT}
    s_nop 0
    buffer_load_dwordx4 v{vL16}, s[44:47], s{sM} offen lds
    {name}_nog:
    """)
    dma_chunk(); dma_chunk(); dma_chunk()
    a(f"""
    v_lshrrev_b32 v{vT0}, 4, v{vLane}       ; g16
    v_and_b32 v{vT1}, 1, v{vT0}             ; mhalf
    v_lshrrev_b32 v{vT0}, 1, v{vT0}         ; khalf
    v_and_b32 v{vT2}, 15, v{vLane}
    v_lshrrev_b32 v{vT3}, 2, v{vT2}         ; r
    v_and_b32 v{vT2}, 3, v{vT2}             ; cq
    v_lshlrev_b32 v{vT1}, 2, v{vT1}
    v_add_u32 v{vT1}, v{vT1}, v{vT2}        ; pq 0..7
    v_lshlrev_b32 v{vT0}, 3, v{vT0}
    v_add_u32 v{vT0}, v{vT0}, v{vT3}        ; 8*khalf + r
    v_lshlrev_b32 v{vT0}, 9, v{vT0}
    """)
    a(f"""
    v_lshrrev_b32 v{vT2}, 1, v{vT1}
    v_lshlrev_b32 v{vT2}, 4, v{vT2}
    v_and_b32 v{vT4}, 1, v{vT1}
    v_lshlrev_b32 v{vT4}, 3, v{vT4}
    v_add_u32 v{vT2}, v{vT2}, v{vT4}
    v_add_u32 v{vT2}, v{vT2}, v{vT0}
    s_lshl_b32 s{sT0}, s{sCh}, 2
    """)
    for tl in range(4):
        if tl < 2:
            a(f"""
            s_add_u32 s{sT1}, s{sT0}, {tl}
            v_xor_b32 v{vT4}, s{sT1}, v{vT3}
            v_lshlrev_b32 v{vT4}, 6, v{vT4}
            v_add_u32 v{vWR[tl]}, v{vT4}, v{vT2}
            """)
        elif tl == 2:
            a(f"""
            v_xor_b32 v{vT4}, 2, v{vT3}
            v_lshlrev_b32 v{vT4}, 6, v{vT4}
            v_add_u32 v{vWR[2]}, v{vT4}, v{vT2}
            v_lshrrev_b32 v{vT4}, 2, v{vT1}
            v_add_u32 v{vT4}, 6, v{vT4}
            v_xor_b32 v{vT4}, v{vT4}, v{vT3}
            v_lshlrev_b32 v{vT4}, 6, v{vT4}
            v_and_b32 v{vT5}, 3, v{vT1}
            v_lshlrev_b32 v{vT5}, 4, v{vT5}
            v_add_u32 v{vT4}, v{vT4}, v{vT5}
            v_and_b32 v{vT5}, 1, v{vT3}
            v_lshlrev_b32 v{vT5}, 3, v{vT5}
            v_add_u32 v{vT4}, v{vT4}, v{vT5}
            v_add_u32 v{vT4}, v{vT4}, v{vT0}
            s_cmp_eq_u32 s{sCh}, 0
            s_cselect_b64 vcc, -1, 0
            v_cndmask_b32 v{vWR[2]}, v{vT4}, v{vWR[2]}, vcc
            """)
        else:
            a(f"""
            v_xor_b32 v{vT4}, 3, v{vT3}
            v_lshlrev_b32 v{vT4}, 6, v{vT4}
            v_add_u32 v{vWR[3]}, v{vT4}, v{vT2}
            """)
    a(f"""
    v_lshrrev_b32 v{vT0}, 1, v{vTok}
    v_and_b32 v{vT0}, 7, v{vT0}
    v_xor_b32 v{vT0}, v{vT0}, v{vHf}
    v_lshlrev_b32 v{vT0}, 4, v{vT0}
    s_lshl_b32 s{sT0}, s{sRt}, 5
    v_add_u32 v{vT1}, s{sT0}, v{vTok}
    v_lshlrev_b32 v{vT1}, 7, v{vT1}
    v_add_u32 v{vT1}, 32768, v{vT1}
    v_add_u32 v{vXR[0]}, v{vT0}, v{vT1}
    v_xor_b32 v{vXR[1]}, 32, v{vXR[0]}
    v_xor_b32 v{vXR[2]}, 64, v{vXR[0]}
    v_xor_b32 v{vXR[3]}, 96, v{vXR[0]}
    v_lshlrev_b32 v{vGA}, 4, v{vHf}
    v_add_u32 v{vGA}, {GT}, v{vGA}
    v_mov_b32 v{vGacc}, 0
    """)
    for i in range(64): a(f"v_mov_b32 v{vD+i}, 0")
    a(f"s_mov_b32 s{sC}, 0")
    def reads(s_, buf, ntile, gate):
        n = 0
        a(f"ds_read_b128 {v(vXF[buf],4)}, v{vXR[s_]}"); n+=1
        for tl in range(ntile):
            for u in range(2):
                a(f"ds_read_b64_tr_b16 {v(vWF[buf]+4*tl+2*u,2)}, v{vWR[tl]} offset:{(16*s_+4*u)*512}"); n+=1
        if gate:
            a(f"ds_read_b128 {v(vGF[buf],4)}, v{vGA} offset:{32*s_}"); n+=1
        return n
    def mm(buf, ntile, isv, gate):
        for tl in range(ntile):
            A, B = (v(vXF[buf],4), v(vWF[buf]+4*tl,4)) if isv else (v(vWF[buf]+4*tl,4), v(vXF[buf],4))
            a(f"v_mfma_f32_32x32x16_bf16 {v(vD+16*tl,16)}, {A}, {B}, {v(vD+16*tl,16)}")
        if gate:
            for i in range(4): a(f"v_dot2_f32_bf16 v{vGacc}, v{vXF[buf]+i}, v{vGF[buf]+i}, v{vGacc}")
    def loop(lbl, isv, ch):
        ntile = 4 if ch==0 else 3
        gate = ch==1
        a(f"s_waitcnt vmcnt(12)\ns_barrier")
        nr = reads(0, 0, ntile, gate)
        a(f"{lbl}_loop:")
        for s_ in range(3):
            reads(s_+1, (s_+1)&1, ntile, gate)
            a(f"s_waitcnt lgkmcnt({nr})")
            mm(s_&1, ntile, isv, gate)
        a(f"s_waitcnt lgkmcnt(0)")
        a(f"s_cmp_eq_u32 s{sC}, 8\ns_cbranch_scc1 {lbl}_last")
        a(f"s_cmp_lt_u32 s{sC}, 7\ns_cbranch_scc1 {lbl}_w6\ns_waitcnt vmcnt(0)\ns_branch {lbl}_wd\n{lbl}_w6:\ns_waitcnt vmcnt(6)\n{lbl}_wd:")
        a("s_barrier")
        a(f"s_cmp_gt_u32 s{sC}, 5\ns_cbranch_scc1 {lbl}_nodma")
        dma_chunk()
        a(f"{lbl}_nodma:")
        a(f"""
        s_add_u32 s{sC}, s{sC}, 1
        s_mul_i32 s{sT0}, s{sC}, 43691
        s_lshr_b32 s{sT0}, s{sT0}, 17        ; c/3
        s_mul_i32 s{sT0}, s{sT0}, 3
        s_cmp_eq_u32 s{sT0}, s{sC}
        s_cselect_b32 s{sT0}, {(-3*SLOT)&0xffffffff}, 0
        s_add_u32 s{sT0}, s{sT0}, {SLOT}
        """)
        for r in vWR[:ntile]+vXR: a(f"v_add_u32 v{r}, s{sT0}, v{r}")
        if gate: a(f"v_add_u32 v{vGA}, 128, v{vGA}")
        reads(0, 0, ntile, gate)
        mm(1, ntile, isv, gate)
        a(f"s_branch {lbl}_loop")
        a(f"{lbl}_last:")
        mm(1, ntile, isv, gate)
        a("s_nop 15\ns_nop 3")
    def phi_regs(regs, tmp):
        for i,r in enumerate(regs): a(f"v_min_f32 v{tmp+i}, 0, v{r}")
        for i,r in enumerate(regs): a(f"v_mul_f32 v{tmp+i}, {LOG2E}, v{tmp+i}")
        for i,r in enumerate(regs): a(f"v_exp_f32 v{tmp+i}, v{tmp+i}")
        for i,r in enumerate(regs): a(f"v_max_f32 v{r}, 0, v{r}")
        for i,r in enumerate(regs): a(f"v_add_f32 v{r}, v{r}, v{tmp+i}")
        for i,r in enumerate(regs): a(f"v_add_f32 v{r}, 0x358637bd, v{r}")
    def max32_rows(reg):
        for k in (1,2,4,8):
            a(f"v_max_f32_dpp v{reg}, v{reg}, v{reg} row_ror:{k} row_mask:0xf bank_mask:0xf\ns_nop 1")
    def pair_kind(p_expr_sgpr_add):
        pass
    def q_epilogue(lbl, ch):
        ntile = 4 if ch==0 else 2
        a(f"v_cmp_eq_u32 vcc, 0, v{vLane}\nv_mov_b32 v{vT5}, 0x7f000000\ns_nop 0\nv_cndmask_b32 v{vT5}, v{vT5}, 0, vcc")
        for tl in range(ntile):
            p = ch*4 + tl
            L = a.uid(lbl+"_p")
            a(f"""
            s_mul_i32 s{sT0}, s{sJ8}, 12
            s_add_u32 s{sT0}, s{sT0}, {2*p}
            s_lshr_b32 s{sKind}, s{sT0}, 5
            s_and_b32 s{sHead}, s{sT0}, 31
            s_cmp_eq_u32 s{sKind}, 1
            s_cbranch_scc1 {L}_k
            s_cmp_eq_u32 s{sKind}, 2
            s_cbranch_scc1 {L}_phi
            """)
            for i in range(16): a(f"v_mul_f32 v{vD+16*tl+i}, {QSC}, v{vD+16*tl+i}")
            a(f"""
            s_lshl_b32 s{sBase}, s{sHead}, 6
            s_add_u32 s{sBase}, s{sBase}, s{sT32}
            s_lshl_b32 s{sBase}, s{sBase}, 10
            s_add_u32 s{sBase}, s{sBase}, {OFF_QBM}
            s_mov_b32 s{sT4}, {64*1024}
            s_branch {L}_st
            {L}_phi:
            """)
            phi_regs([vD+16*tl+i for i in range(16)], vE)
            a(f"""
            s_lshl_b32 s{sBase}, s{sHead}, 6
            s_add_u32 s{sBase}, s{sBase}, s{sT32}
            s_lshl_b32 s{sBase}, s{sBase}, 10
            s_add_u32 s{sBase}, s{sBase}, {OFF_PQM}
            s_mov_b32 s{sT4}, {64*1024}
            s_branch {L}_st
            {L}_k:
            """)
            for hs in range(2):
                b = vD+16*tl+8*hs
                a(f"v_mul_f32 v{vE+hs}, v{b}, v{b}")
                for i in range(1,8): a(f"v_fmac_f32 v{vE+hs}, v{b+i}, v{b+i}")
            a(f"v_mov_b32 v{vE+2}, v{vE}\nv_mov_b32 v{vE+3}, v{vE+1}\ns_nop 1")
            a(f"v_permlane32_swap_b32 v{vE}, v{vE+2}\nv_permlane32_swap_b32 v{vE+1}, v{vE+3}\ns_nop 1")
            a(f"v_add_f32 v{vE}, v{vE}, v{vE+2}\nv_add_f32 v{vE+1}, v{vE+1}, v{vE+3}\ns_nop 1")
            for k in (1,2,4,8):
                a(f"v_max_f32_dpp v{vE}, v{vE}, v{vE} row_ror:{k} row_mask:0xf bank_mask:0xf")
                a(f"v_max_f32_dpp v{vE+1}, v{vE+1}, v{vE+1} row_ror:{k} row_mask:0xf bank_mask:0xf\ns_nop 0")
            a(f"""
            s_nop 0
            v_readlane_b32 s{sT0}, v{vE}, 0
            v_readlane_b32 s{sT1}, v{vE}, 16
            v_readlane_b32 s{sT2}, v{vE+1}, 0
            v_readlane_b32 s{sT3}, v{vE+1}, 16
            s_nop 3
            s_max_u32 s{sT0}, s{sT0}, s{sT1}
            s_max_u32 s{sT2}, s{sT2}, s{sT3}
            v_mov_b32 v{vE}, s{sT0}
            v_mov_b32 v{vE+1}, s{sT2}
            s_lshl_b32 s{sT0}, s{sHead}, 6
            s_add_u32 s{sT0}, s{sT0}, s{sT32}
            s_lshl_b32 s{sT0}, s{sT0}, 3
            s_add_u32 s{sT0}, s{sT0}, {OFF_KM}
            s_add_u32 s{sT1}, s{sT0}, 512
            buffer_store_dword v{vE}, v{vT5}, s[12:15], s{sT0} offen
            buffer_store_dword v{vE+1}, v{vT5}, s[12:15], s{sT1} offen
            s_mul_i32 s{sBase}, s{sHead}, {HS_KVB}
            s_lshr_b32 s{sT0}, s{sT32}, 3
            s_mul_i32 s{sT0}, s{sT0}, {CH}
            s_add_u32 s{sBase}, s{sBase}, s{sT0}
            s_and_b32 s{sT0}, s{sT32}, 7
            s_lshl_b32 s{sT0}, s{sT0}, 10
            s_add_u32 s{sBase}, s{sBase}, s{sT0}
            s_add_u32 s{sBase}, s{sBase}, {OFF_KVB}
            s_mov_b32 s{sT4}, {HS_KVB}
            {L}_st:
            """)
            for hs in range(2):
                b = vD+16*tl+8*hs
                for i in range(4): a(f"v_cvt_pk_bf16_f32 v{b+i}, v{b+2*i}, v{b+2*i+1}")
            a(f"s_add_u32 s{sT4}, s{sT4}, s{sBase}")
            a(f"buffer_store_dwordx4 {v(vD+16*tl,4)}, v{vL16}, s[12:15], s{sBase} offen")
            a(f"buffer_store_dwordx4 {v(vD+16*tl+8,4)}, v{vL16}, s[12:15], s{sT4} offen")
        if ch == 1:
            b0 = vD+32
            for aa in range(3):
                L = a.uid(lbl+"_r")
                b = b0+4*aa
                a(f"""
                s_mul_i32 s{sT0}, s{sJ8}, 12
                s_add_u32 s{sT0}, s{sT0}, {4*aa}
                s_lshr_b32 s{sKind}, s{sT0}, 5
                s_and_b32 s{sHead}, s{sT0}, 31
                s_cmp_eq_u32 s{sKind}, 1
                s_cbranch_scc1 {L}_k
                s_cmp_eq_u32 s{sKind}, 2
                s_cbranch_scc1 {L}_phi
                """)
                for i in range(4): a(f"v_mul_f32 v{b+i}, {QSC}, v{b+i}")
                a(f"s_mov_b32 s{sBase}, {OFF_QBR}\ns_branch {L}_q\n{L}_phi:")
                phi_regs([b+i for i in range(4)], vE)
                a(f"s_mov_b32 s{sBase}, {OFF_PQR}\n{L}_q:")
                a(f"""
                s_lshl_b32 s{sT0}, s{sHead}, 6
                s_add_u32 s{sT0}, s{sT0}, s{sT32}
                s_lshl_b32 s{sT0}, s{sT0}, 7
                s_add_u32 s{sBase}, s{sBase}, s{sT0}
                s_mov_b32 s{sT4}, 8192
                v_lshlrev_b32 v{vT0}, 2, v{vTok}
                v_lshlrev_b32 v{vT1}, 14, v{vHf}
                v_add_u32 v{vT0}, v{vT0}, v{vT1}
                s_branch {L}_st
                {L}_k:
                v_mul_f32 v{vE}, v{b}, v{b}
                v_mul_f32 v{vE+1}, v{b+2}, v{b+2}
                v_fmac_f32 v{vE}, v{b+1}, v{b+1}
                v_fmac_f32 v{vE+1}, v{b+3}, v{b+3}
                s_nop 1
                """)
                for k in (1,2,4,8):
                    a(f"v_max_f32_dpp v{vE}, v{vE}, v{vE} row_ror:{k} row_mask:0xf bank_mask:0xf")
                    a(f"v_max_f32_dpp v{vE+1}, v{vE+1}, v{vE+1} row_ror:{k} row_mask:0xf bank_mask:0xf\ns_nop 0")
                a(f"""
                s_lshl_b32 s{sT4}, s{sHead}, 6
                s_add_u32 s{sT4}, s{sT4}, s{sT32}
                s_lshl_b32 s{sT4}, s{sT4}, 3
                s_add_u32 s{sT4}, s{sT4}, {OFF_KM+4}
                """)
                for (rg, l0, l1, dh) in ((vE,0,16,0),(vE+1,0,16,1),(vE,32,48,2),(vE+1,32,48,3)):
                    a(f"""
                    v_readlane_b32 s{sT0}, v{rg}, {l0}
                    v_readlane_b32 s{sT1}, v{rg}, {l1}
                    s_nop 3
                    s_max_u32 s{sT0}, s{sT0}, s{sT1}
                    v_mov_b32 v{vE+2+dh}, s{sT0}
                    s_add_u32 s{sT1}, s{sT4}, {dh*512}
                    buffer_store_dword v{vE+2+dh}, v{vT5}, s[12:15], s{sT1} offen
                    """)
                a(f"""
                s_mul_i32 s{sBase}, s{sHead}, {HS_KVB}
                s_lshr_b32 s{sT0}, s{sT32}, 3
                s_mul_i32 s{sT0}, s{sT0}, {CH}
                s_add_u32 s{sBase}, s{sBase}, s{sT0}
                s_lshr_b32 s{sT0}, s{sT32}, 2
                s_and_b32 s{sT0}, s{sT0}, 1
                s_lshl_b32 s{sT0}, s{sT0}, 9
                s_add_u32 s{sBase}, s{sBase}, s{sT0}
                s_and_b32 s{sT0}, s{sT32}, 3
                s_lshl_b32 s{sT0}, s{sT0}, 2
                s_add_u32 s{sBase}, s{sBase}, s{sT0}
                s_add_u32 s{sBase}, s{sBase}, {OFF_KVB+8192}
                s_mov_b32 s{sT4}, {HS_KVB}
                v_lshlrev_b32 v{vT0}, 4, v{vTok}
                v_mul_u32_u24 v{vT1}, {2*HS_KVB}, v{vHf}
                v_add_u32 v{vT0}, v{vT0}, v{vT1}
                {L}_st:
                v_cvt_pk_bf16_f32 v{b}, v{b}, v{b+1}
                v_cvt_pk_bf16_f32 v{b+1}, v{b+2}, v{b+3}
                s_add_u32 s{sT4}, s{sT4}, s{sBase}
                buffer_store_dword v{b}, v{vT0}, s[12:15], s{sBase} offen
                buffer_store_dword v{b+1}, v{vT0}, s[12:15], s{sT4} offen
                """)
            gate_store(lbl)
    def gate_store(lbl):
        a(f"""
        s_cmp_lg_u32 s{sJt}, 0
        s_cbranch_scc1 {lbl}_nogate
        v_mov_b32 v{vT0}, v{vGacc}
        s_nop 1
        v_permlane32_swap_b32 v{vGacc}, v{vT0}
        s_nop 1
        v_add_f32 v{vGacc}, v{vGacc}, v{vT0}
        v_mul_f32 v{vGacc}, 0xbfb8aa3b, v{vGacc}
        v_exp_f32 v{vGacc}, v{vGacc}
        s_nop 0
        v_add_f32 v{vGacc}, 1.0, v{vGacc}
        v_rcp_f32 v{vGacc}, v{vGacc}
        v_lshlrev_b32 v{vT0}, 2, v{vTok}
        s_lshl_b32 s{sT0}, s{sT32}, 7
        s_add_u32 s{sT0}, s{sT0}, {OFF_G}
        buffer_store_dword v{vGacc}, v{vT0}, s[12:15], s{sT0} offen
        {lbl}_nogate:
        """)
    def v_base(kind_s, head_s, dst):
        L = a.uid("vb")
        a(f"""
        s_cmp_eq_u32 s{kind_s}, 0
        s_cbranch_scc0 {L}_a
        s_mul_i32 s{dst}, s{head_s}, {HS_KVB}
        s_lshr_b32 s{sT0}, s{sT32}, 3
        s_mul_i32 s{sT0}, s{sT0}, {CH}
        s_add_u32 s{dst}, s{dst}, s{sT0}
        s_and_b32 s{sT0}, s{sT32}, 7
        s_mul_i32 s{sT0}, s{sT0}, 1280
        s_add_u32 s{dst}, s{dst}, s{sT0}
        s_add_u32 s{dst}, s{dst}, {OFF_KVB+9216}
        s_mov_b32 s{sT4}, {HS_KVB}
        s_branch {L}_d
        {L}_a:
        s_mul_i32 s{dst}, s{head_s}, {HS_V}
        s_mul_i32 s{sT0}, s{sT32}, 1280
        s_add_u32 s{dst}, s{dst}, s{sT0}
        s_cmp_eq_u32 s{kind_s}, 1
        s_cselect_b32 s{sT0}, {OFF_PK}, {0}
        s_cselect_b32 s{sT1}, 0, {OFF_VA}
        s_add_u32 s{dst}, s{dst}, s{sT0}
        s_add_u32 s{dst}, s{dst}, s{sT1}
        s_mov_b32 s{sT4}, {HS_V}
        {L}_d:
        """)
    def v_epilogue(lbl, ch):
        ntile = 4 if ch==0 else 2
        for tl in range(ntile):
            p = ch*4 + tl
            L = a.uid(lbl+"_p")
            a(f"""
            s_mul_i32 s{sT0}, s{sJ8}, 12
            s_add_u32 s{sT0}, s{sT0}, {2*p}
            s_lshr_b32 s{sKind}, s{sT0}, 5
            s_and_b32 s{sHead}, s{sT0}, 31
            s_cmp_lg_u32 s{sKind}, 1
            s_cbranch_scc1 {L}_nophi
            """)
            phi_regs([vD+16*tl+i for i in range(16)], vE)
            a(f"{L}_nophi:")
            v_base(sKind, sHead, sBase)
            a(f"""
            v_lshrrev_b32 v{vT0}, 4, v{vTok}
            v_mul_lo_u32 v{vT0}, v{vT0}, s{sT4}
            v_and_b32 v{vT1}, 15, v{vTok}
            v_lshlrev_b32 v{vT1}, 4, v{vT1}
            v_add_u32 v{vT0}, v{vT0}, v{vT1}
            v_mul_u32_u24 v{vT1}, 320, v{vHf}
            v_add_u32 v{vT0}, v{vT0}, v{vT1}
            """)
            for hs in range(2):
                b = vD+16*tl+8*hs
                for i in range(4): a(f"v_cvt_pk_bf16_f32 v{b+i}, v{b+2*i}, v{b+2*i+1}")
            a(f"buffer_store_dwordx4 {v(vD+16*tl,4)}, v{vT0}, s[12:15], s{sBase} offen")
            a(f"buffer_store_dwordx4 {v(vD+16*tl+8,4)}, v{vT0}, s[12:15], s{sBase} offen offset:640")
        if ch == 1:
            b0 = vD+32
            def lane_off(vL, vOut, vKindOut, rho_expr):
                a(f"""
                v_lshrrev_b32 v{vKindOut}, 5, v{vL}
                v_and_b32 v{vT3}, 31, v{vL}
                s_lshr_b32 s{sT0}, s{sT32}, 3
                s_mul_i32 s{sT0}, s{sT0}, {CH}
                s_and_b32 s{sT1}, s{sT32}, 7
                s_mul_i32 s{sT1}, s{sT1}, 1280
                s_add_u32 s{sT0}, s{sT0}, s{sT1}
                s_add_u32 s{sT0}, s{sT0}, {OFF_KVB+9216}
                s_mov_b32 s{sT1}, {HS_KVB}
                v_mul_lo_u32 v{vOut}, v{vT3}, s{sT1}
                v_add_u32 v{vOut}, s{sT0}, v{vOut}
                s_mul_i32 s{sT0}, s{sT32}, 1280
                v_mul_u32_u24 v{vT3}, {HS_V}, v{vT3}
                v_add_u32 v{vT3}, s{sT0}, v{vT3}
                v_add_u32 v{vT4}, {OFF_VA}, v{vT3}
                v_add_u32 v{vT3}, {OFF_PK}, v{vT3}
                v_cmp_eq_u32 vcc, 1, v{vKindOut}
                s_nop 1
                v_cndmask_b32 v{vOut}, v{vOut}, v{vT3}, vcc
                v_cmp_eq_u32 vcc, 2, v{vKindOut}
                s_nop 1
                v_cndmask_b32 v{vOut}, v{vOut}, v{vT4}, vcc
                v_mul_u32_u24 v{vT3}, 320, v{vHf}
                v_add_u32 v{vOut}, v{vOut}, v{vT3}
                """)
            a(f"""
            s_mul_i32 s{sT2}, s{sJ8}, 12
            v_lshrrev_b32 v{vT0}, 2, v{vTok}
            v_lshlrev_b32 v{vT0}, 1, v{vT0}
            v_bfe_u32 v{vT1}, v{vTok}, 1, 1
            v_add_u32 v{vT0}, v{vT0}, v{vT1}
            v_add_u32 v{vT0}, s{sT2}, v{vT0}
            """)
            lane_off(vT0, vT1, vT2, None)
            a(f"""
            v_and_b32 v{vT3}, 1, v{vTok}
            v_lshlrev_b32 v{vT3}, 4, v{vT3}
            v_add_u32 v{vT3}, 256, v{vT3}
            v_add_u32 v{vT1}, v{vT1}, v{vT3}
            v_cmp_gt_u32 vcc, 24, v{vTok}
            v_mov_b32 v{vT3}, 0x7f000000
            s_nop 0
            v_cndmask_b32 v{vT1}, v{vT3}, v{vT1}, vcc
            """)
            for half in range(2):
                regs = [b0+8*half+i for i in range(8)]
                for i,r in enumerate(regs): a(f"v_mov_b32 v{vE+8+i}, v{r}")
                phi_regs([vE+8+i for i in range(8)], vE)
                a(f"v_cmp_eq_u32 vcc, 1, v{vT2}\ns_nop 1")
                for i,r in enumerate(regs): a(f"v_cndmask_b32 v{r}, v{r}, v{vE+8+i}, vcc")
            for hs in range(2):
                b = b0+8*hs
                for i in range(4): a(f"v_cvt_pk_bf16_f32 v{b+i}, v{b+2*i}, v{b+2*i+1}")
            a(f"buffer_store_dwordx4 {v(b0,4)}, v{vT1}, s[12:15], 0 offen")
            a(f"buffer_store_dwordx4 {v(b0+8,4)}, v{vT1}, s[12:15], 0 offen offset:640")
            a(f"""
            s_mul_i32 s{sT2}, s{sJ8}, 12
            v_add_u32 v{vT0}, s{sT2}, v{vTok}
            """)
            lane_off(vT0, vT1, vT2, None)
            a(f"""
            v_add_u32 v{vT1}, {18*16}, v{vT1}
            v_cmp_gt_u32 vcc, 12, v{vTok}
            v_cmp_ne_u32 s[{sT0}:{sT0+1}], 1, v{vT2}
            v_mov_b32 v{vT3}, 0x7f000000
            s_nop 1
            s_and_b64 vcc, vcc, s[{sT0}:{sT0+1}]
            v_cndmask_b32 v{vT1}, v{vT3}, v{vT1}, vcc
            v_mov_b32 v{vE}, 0x3f803f80
            v_mov_b32 v{vE+1}, 0x3f803f80
            v_mov_b32 v{vE+2}, 0x3f803f80
            v_mov_b32 v{vE+3}, 0x3f803f80
            buffer_store_dwordx4 {v(vE,4)}, v{vT1}, s[12:15], 0 offen
            buffer_store_dwordx4 {v(vE,4)}, v{vT1}, s[12:15], 0 offen offset:640
            """)
            gate_store(lbl)
    a(f"""
    s_lshl_b32 s{sT0}, s{sIsV}, 1
    s_add_u32 s{sT0}, s{sT0}, s{sCh}
    s_cmp_eq_u32 s{sT0}, 1
    s_cbranch_scc1 {name}_q1
    s_cmp_eq_u32 s{sT0}, 2
    s_cbranch_scc1 {name}_v0
    s_cmp_eq_u32 s{sT0}, 3
    s_cbranch_scc1 {name}_v1
    """)
    loop(name+"_q0", False, 0); q_epilogue(name+"_q0", 0); a("s_endpgm")
    a(f"{name}_q1:"); loop(name+"_q1", False, 1); q_epilogue(name+"_q1", 1); a("s_endpgm")
    a(f"{name}_v0:"); loop(name+"_v0", True, 0); v_epilogue(name+"_v0", 0); a("s_endpgm")
    a(f"{name}_v1:"); loop(name+"_v1", True, 1); v_epilogue(name+"_v1", 1)
    a(f"{name}_end:\ns_endpgm")
    return kernel_head(name) + a.text() + kernel_desc(name, NV)
```

```python
from asmlib import *
from model import *
LDS_K2 = 163840
def gen_k2(name="k2_kernel", stamps=False):
    a = Asm()
    nst=[0]
    def stamp():
        if stamps:
            a(f"s_memtime s[{40+2*nst[0]}:{41+2*nst[0]}]"); nst[0]+=1
    vLane, vT0, vT1, vT2, vT3 = 1, 2, 3, 4, 5
    vAK, vAR, vAV = 6, 7, 8
    vOffQ, vOffR, vOffKV, vL4 = 9, 10, 11, 19
    vQ1 = [12, 20]
    vQ2 = [24, 28]
    vPQ1, vPQ2 = 32, 16
    vK1 = [36, 40]; vKR = [44, 48]
    vV = [52, 60]
    vP = 68
    vM = [76, 77]
    vS = [80, 96]; vO = [112, 128]; vNM = [144, 160]; vKV = 176
    vPK = [192, 200]
    NV = 208
    sHead, sQb, sW, sQt, sT0, sT1, sT2, sT3 = 12, 13, 14, 15, 16, 17, 18, 19
    sKVB, sM0, sKV, sFlag = 20, 21, 22, 23
    sQM, sQR, sHalf, sP = 24, 25, 26, 27
    sOM, sOR = 28, 29
    sF0, sF1 = 30, 31
    a(f"""
    s_cmp_ge_u32 s2, 256
    s_cbranch_scc1 {name}_end
    s_load_dwordx2 s[4:5], s[0:1], 72
    s_memtime s[40:41]
    s_memrealtime s[60:61]
    s_and_b32 s{sHead}, s2, 7
    s_lshl_b32 s{sHead}, s{sHead}, 2
    s_lshr_b32 s{sT0}, s2, 3
    s_and_b32 s{sT1}, s{sT0}, 3
    s_add_u32 s{sHead}, s{sHead}, s{sT1}
    s_lshr_b32 s{sQb}, s2, 5
    v_lshrrev_b32 v{vT0}, 6, v0
    v_and_b32 v{vLane}, 63, v0
    v_readfirstlane_b32 s{sW}, v{vT0}
    v_lshlrev_b32 v{vOffQ}, 4, v{vLane}
    v_and_b32 v{vT1}, 31, v{vLane}
    v_lshrrev_b32 v{vT2}, 5, v{vLane}
    v_lshlrev_b32 v{vL4}, 2, v{vT1}
    s_and_b32 s{sP}, s{sW}, 3
    s_lshr_b32 s{sHalf}, s{sW}, 2
    s_lshl_b32 s{sQt}, s{sQb}, 3
    s_lshl_b32 s{sT0}, s{sP}, 1
    s_add_u32 s{sQt}, s{sQt}, s{sT0}
    s_lshl_b32 s{sT0}, s{sHead}, 6
    s_add_u32 s{sT0}, s{sT0}, s{sQt}
    s_lshl_b32 s{sQM}, s{sT0}, 10
    s_lshl_b32 s{sQR}, s{sT0}, 7
    s_lshl_b32 s{sT1}, s{sHalf}, 10
    s_add_u32 s{sOM}, s{sQM}, s{sT1}
    s_lshl_b32 s{sT1}, s{sHalf}, 7
    s_add_u32 s{sOR}, s{sQR}, s{sT1}
    s_waitcnt lgkmcnt(0)
    s_mov_b32 s8, s4
    s_mov_b32 s9, s5
    s_mov_b32 s10, {WS_END}
    s_mov_b32 s11, 0x00020000
    s_add_u32 s{sT0}, s{sQM}, {OFF_QBM}
    s_add_u32 s{sT1}, s{sQR}, {OFF_QBR}
    s_lshl_b32 s{sT2}, s{sHead}, 9
    s_add_u32 s{sT2}, s{sT2}, {OFF_KM}
    v_lshlrev_b32 v{vT3}, 3, v{vLane}
    """)
    a.vmem(f"buffer_load_dwordx4 {v(vQ1[0],4)}, v{vOffQ}, s[8:11], s{sT0} offen", "q")
    a.vmem(f"buffer_load_dwordx4 {v(vQ1[1],4)}, v{vOffQ}, s[8:11], s{sT0} offen offset:1024", "q")
    a.vmem(f"buffer_load_dword v{vQ2[0]}, v{vL4}, s[8:11], s{sT1} offen", "q")
    a.vmem(f"buffer_load_dword v{vQ2[1]}, v{vL4}, s[8:11], s{sT1} offen offset:128", "q")
    a.vmem(f"buffer_load_dwordx2 {v(vM[0],2)}, v{vT3}, s[8:11], s{sT2} offen", "q")
    a(f"""
    s_mul_i32 s{sKVB}, s{sHead}, {8*CH}
    s_add_u32 s{sKVB}, s{sKVB}, {OFF_KVB}
    """)
    ndma = [0]
    def dma_to(n, track=True):
        while ndma[0] < n:
            i = ndma[0]
            k0 = (8*i)//19; k1 = (8*i+7)//19
            c0 = (k0//2 + 4*(k0%2) - k0);
            a(f"s_lshl_b32 s{sT0}, s{sW}, 10")
            if k1 == k0:
                a(f"s_add_u32 s{sT0}, s{sT0}, {8*i*1024 + c0*CH}")
            else:
                c1 = (k1//2 + 4*(k1%2) - k1); wthr = 19*k1 - 8*i
                a(f"s_cmp_ge_u32 s{sW}, {wthr}")
                a(f"s_cselect_b32 s{sT1}, {((c1-c0)*CH) & 0xffffffff}, 0")
                a(f"s_add_u32 s{sT0}, s{sT0}, s{sT1}")
                a(f"s_add_u32 s{sT0}, s{sT0}, {(8*i*1024 + c0*CH) & 0xffffffff}")
            a(f"s_mov_b32 m0, s{sT0}")
            a(f"s_add_u32 s{sT0}, s{sT0}, s{sKVB}")
            if track: a.vmem(f"buffer_load_dwordx4 v{vOffQ}, s[8:11], s{sT0} offen lds", ("dma", i))
            else: a(f"buffer_load_dwordx4 v{vOffQ}, s[8:11], s{sT0} offen lds")
            ndma[0] += 1
    NST = [(38*(s_+1)+7)//8 for s_ in range(4)]
    dma_to(NST[0])
    a(f"s_add_u32 s{sT0}, s{sOM}, {OFF_PQM}\ns_add_u32 s{sT1}, s{sOR}, {OFF_PQR}")
    a.vmem(f"buffer_load_dwordx4 {v(vPQ1,4)}, v{vOffQ}, s[8:11], s{sT0} offen", "pq")
    a.vmem(f"buffer_load_dword v{vPQ2}, v{vL4}, s[8:11], s{sT1} offen", "pq")
    dma_to(NST[1])
    a(f"""
    s_mul_i32 s{sT0}, s{sHalf}, {4*CH}
    v_add_u32 v{vAK}, s{sT0}, v{vOffQ}
    v_lshlrev_b32 v{vT0}, 4, v{vT1}
    v_mul_u32_u24 v{vOffKV}, 320, v{vT2}
    v_add_u32 v{vOffKV}, v{vOffKV}, v{vT0}
    v_add_u32 v{vAR}, 8192, v{vT0}
    v_add_u32 v{vAR}, s{sT0}, v{vAR}
    v_add_u32 v{vAV}, 9216, v{vOffKV}
    v_add_u32 v{vAV}, s{sT0}, v{vAV}
    v_mov_b32 v{vT0}, 0x10000000
    v_cmp_gt_u32 vcc, 19, v{vT1}
    s_nop 1
    v_cndmask_b32 v{vAV}, v{vT0}, v{vAV}, vcc
    v_cmp_gt_u32 vcc, 32, v{vLane}
    s_nop 1
    v_cndmask_b32 v{vAR}, v{vT0}, v{vAR}, vcc
    v_mov_b32 v{vT0}, 0x7f000000
    v_cndmask_b32 v{vOffR}, v{vT0}, v{vL4}, vcc
    """)
    a(f"""
    s_mul_i32 s{sKV}, s{sHead}, {128*640}
    s_mul_i32 s{sT0}, s{sW}, 1280
    s_add_u32 s{sKV}, s{sKV}, s{sT0}
    """)
    for i in range(16):
        a(f"v_mov_b32 v{vO[0]+i}, 0\nv_mov_b32 v{vO[1]+i}, 0\nv_mov_b32 v{vKV+i}, 0")
    a.wait_vm("q")
    a(f"""
    v_cndmask_b32 v{vQ2[0]}, 0, v{vQ2[0]}, vcc
    v_cndmask_b32 v{vQ2[1]}, 0, v{vQ2[1]}, vcc
    v_max_f32_dpp v{vM[0]}, v{vM[0]}, v{vM[0]} row_ror:1 row_mask:0xf bank_mask:0xf
    v_max_f32_dpp v{vM[1]}, v{vM[1]}, v{vM[1]} row_ror:1 row_mask:0xf bank_mask:0xf
    v_dot2_f32_bf16 v{vT0}, v{vQ1[0]}, v{vQ1[0]}, 0
    v_dot2_f32_bf16 v{vT1}, v{vQ1[1]}, v{vQ1[1]}, 0
    v_max_f32_dpp v{vM[0]}, v{vM[0]}, v{vM[0]} row_ror:2 row_mask:0xf bank_mask:0xf
    v_max_f32_dpp v{vM[1]}, v{vM[1]}, v{vM[1]} row_ror:2 row_mask:0xf bank_mask:0xf
    v_dot2_f32_bf16 v{vT0}, v{vQ1[0]+1}, v{vQ1[0]+1}, v{vT0}
    v_dot2_f32_bf16 v{vT1}, v{vQ1[1]+1}, v{vQ1[1]+1}, v{vT1}
    v_max_f32_dpp v{vM[0]}, v{vM[0]}, v{vM[0]} row_ror:4 row_mask:0xf bank_mask:0xf
    v_max_f32_dpp v{vM[1]}, v{vM[1]}, v{vM[1]} row_ror:4 row_mask:0xf bank_mask:0xf
    v_dot2_f32_bf16 v{vT0}, v{vQ1[0]+2}, v{vQ1[0]+2}, v{vT0}
    v_dot2_f32_bf16 v{vT1}, v{vQ1[1]+2}, v{vQ1[1]+2}, v{vT1}
    v_max_f32_dpp v{vM[0]}, v{vM[0]}, v{vM[0]} row_ror:8 row_mask:0xf bank_mask:0xf
    v_max_f32_dpp v{vM[1]}, v{vM[1]}, v{vM[1]} row_ror:8 row_mask:0xf bank_mask:0xf
    v_dot2_f32_bf16 v{vT0}, v{vQ1[0]+3}, v{vQ1[0]+3}, v{vT0}
    v_dot2_f32_bf16 v{vT1}, v{vQ1[1]+3}, v{vQ1[1]+3}, v{vT1}
    v_dot2_f32_bf16 v{vT0}, v{vQ2[0]}, v{vQ2[0]}, v{vT0}
    v_dot2_f32_bf16 v{vT1}, v{vQ2[1]}, v{vQ2[1]}, v{vT1}
    v_readlane_b32 s{sT0}, v{vM[0]}, 0
    v_readlane_b32 s{sT1}, v{vM[0]}, 16
    v_readlane_b32 s{sT2}, v{vM[0]}, 32
    v_readlane_b32 s{sT3}, v{vM[0]}, 48
    s_nop 3
    s_max_u32 s{sT0}, s{sT0}, s{sT1}
    s_max_u32 s{sT2}, s{sT2}, s{sT3}
    s_max_u32 s{sF0}, s{sT0}, s{sT2}
    v_readlane_b32 s{sT0}, v{vM[1]}, 0
    v_readlane_b32 s{sT1}, v{vM[1]}, 16
    v_readlane_b32 s{sT2}, v{vM[1]}, 32
    v_readlane_b32 s{sT3}, v{vM[1]}, 48
    s_nop 3
    s_max_u32 s{sT0}, s{sT0}, s{sT1}
    s_max_u32 s{sT2}, s{sT2}, s{sT3}
    s_max_u32 s{sT1}, s{sT0}, s{sT2}
    s_mov_b32 s{sT0}, s{sF0}
    v_mov_b32 v{vQ2[0]+1}, 0
    v_mov_b32 v{vQ2[0]+2}, 0
    v_mov_b32 v{vQ2[0]+3}, v{vQ2[0]}
    v_mov_b32 v{vQ2[1]+1}, 0
    v_mov_b32 v{vQ2[1]+2}, 0
    v_mov_b32 v{vQ2[1]+3}, v{vQ2[1]}
    v_mov_b32 v{vT2}, v{vT0}
    v_mov_b32 v{vT3}, v{vT1}
    v_mov_b32 v{vM[1]}, s{sT0}
    v_add_f32 v{vM[1]}, s{sT1}, v{vM[1]}
    v_permlane32_swap_b32 v{vT0}, v{vT2}
    v_permlane32_swap_b32 v{vT1}, v{vT3}
    s_nop 1
    v_add_f32 v{vT0}, v{vT0}, v{vT2}
    v_add_f32 v{vT1}, v{vT1}, v{vT3}
    v_mul_f32 v{vT0}, v{vT0}, v{vM[1]}
    v_mul_f32 v{vT1}, v{vT1}, v{vM[1]}
    v_sqrt_f32 v{vT0}, v{vT0}
    v_sqrt_f32 v{vT1}, v{vT1}
    s_nop 0
    v_mul_f32 v{vM[0]}, 0x3f828f5c, v{vT0}
    v_mul_f32 v{vM[1]}, 0x3f828f5c, v{vT1}
    v_add_f32 v{vM[0]}, 0x3a83126f, v{vM[0]}
    v_add_f32 v{vM[1]}, 0x3a83126f, v{vM[1]}
    v_max_f32 v{vT0}, v{vM[0]}, v{vM[1]}
    v_mov_b32 v{vT1}, 0x42400000
    v_cmp_nle_f32 vcc, v{vT0}, v{vT1}
    v_cmp_u_f32 s[{sF0}:{sF0+1}], v{vM[0]}, v{vM[1]}
    s_nop 3
    s_or_b64 vcc, vcc, s[{sF0}:{sF0+1}]
    s_cmp_lg_u64 vcc, 0
    s_cselect_b32 s{sFlag}, 1, 0
    v_mov_b32 v{vT2}, s{sFlag}
    s_lshl_b32 s{sT0}, s{sW}, 2
    s_add_u32 s{sT0}, s{sT0}, {8*CH}
    v_mov_b32 v{vT3}, s{sT0}
    """)
    a.ds(f"ds_write_b32 v{vT3}, v{vT2}", "flag")
    def set_negm():
        for q in range(2):
            a(f"v_sub_f32 v{vNM[q]}, 0, v{vM[q]}")
            for i in range(1,16): a(f"v_mov_b32 v{vNM[q]+i}, v{vNM[q]}")
    set_negm()
    def kv_loads(c):
        for g in range(2):
            a(f"s_add_u32 s{sT0}, s{sKV}, {OFF_PK + c*16*640 + g*640}")
            a.vmem(f"buffer_load_dwordx4 {v(vPK[g],4)}, v{vOffKV}, s[8:11], s{sT0} offen", ("kv",c))
            a(f"s_add_u32 s{sT0}, s{sKV}, {OFF_VA + c*16*640 + g*640}")
            a.vmem(f"buffer_load_dwordx4 {v(vPK[g]+4,4)}, v{vOffKV}, s[8:11], s{sT0} offen", ("kv",c))
    def kv_mfma():
        for g in range(2):
            a(f"v_mfma_f32_32x32x16_bf16 {v(vKV,16)}, {v(vPK[g],4)}, {v(vPK[g]+4,4)}, {v(vKV,16)}")
    nst[0]=1
    stamp()
    a.wait_vm(("dma", NST[0]-1))
    a.wait_lg_all()
    a("s_barrier")
    stamp()
    a(f"v_mov_b32 v{vT3}, {8*CH}")
    a.ds(f"ds_read_b128 {v(vS[0],4)}, v{vT3}")
    a.ds(f"ds_read_b128 {v(vS[0]+4,4)}, v{vT3} offset:16")
    a.wait_lg_all()
    for i in range(1,8): a(f"v_or_b32 v{vS[0]}, v{vS[0]}, v{vS[0]+i}")
    a(f"""
    s_nop 0
    v_readfirstlane_b32 s{sFlag}, v{vS[0]}
    s_nop 3
    s_cmp_eq_u32 s{sFlag}, 0
    s_cbranch_scc1 {name}_fast
    """)
    saved_n = ndma[0]
    a.c("fallback: load everything, compute true row max over all keys")
    dma_to(19, track=False)
    ndma[0] = saved_n
    a("s_waitcnt vmcnt(0)\ns_barrier")
    a(f"""
    v_mov_b32 v{vM[0]}, 0xff7fffff
    v_mov_b32 v{vM[1]}, 0xff7fffff
    v_mov_b32 v{vT0}, v{vOffQ}
    v_and_b32 v{vT1}, 31, v{vLane}
    v_lshlrev_b32 v{vT1}, 4, v{vT1}
    v_add_u32 v{vT1}, 8192, v{vT1}
    s_mov_b32 s{sT0}, 0
    {name}_fb_chunk:
    """)
    for t in range(8):
        a(f"ds_read_b128 {v(vK1[0],4)}, v{vT0} offset:{t*1024}")
        if t%4==0: a(f"ds_read_b128 {v(vKR[0],4)}, v{vT1} offset:{(t//4)*512}")
        a("s_waitcnt lgkmcnt(0)")
        i = t%4
        for q in range(2):
            a(f"v_mfma_f32_32x32x16_bf16 {v(vS[q],16)}, {v(vK1[0],4)}, {v(vQ1[q],4)}, 0")
            a(f"v_mfma_f32_32x32x8_bf16 {v(vS[q],16)}, {v(vKR[0]+(i&2),2)}, {v(vQ2[q]+2*(i&1),2)}, {v(vS[q],16)}")
        a("s_nop 15\ns_nop 3")
        for q in range(2):
            for j in range(0,16,2): a(f"v_max3_f32 v{vM[q]}, v{vM[q]}, v{vS[q]+j}, v{vS[q]+j+1}")
    a(f"""
    v_add_u32 v{vT0}, {CH}, v{vT0}
    v_add_u32 v{vT1}, {CH}, v{vT1}
    s_add_u32 s{sT0}, s{sT0}, 1
    s_cmp_lt_u32 s{sT0}, 8
    s_cbranch_scc1 {name}_fb_chunk
    v_mov_b32 v{vT0}, v{vM[0]}
    v_mov_b32 v{vT1}, v{vM[1]}
    s_nop 1
    v_permlane32_swap_b32 v{vM[0]}, v{vT0}
    v_permlane32_swap_b32 v{vM[1]}, v{vT1}
    s_nop 1
    v_max_f32 v{vM[0]}, v{vM[0]}, v{vT0}
    v_max_f32 v{vM[1]}, v{vM[1]}, v{vT1}
    """)
    set_negm()
    a(f"{name}_fast:")
    def koff(t): return (t//8)*CH + (t%8)*1024
    def roff(t): return (t//8)*CH + ((t%8)//4)*512
    def voff(t,j): return (t//8)*CH + ((t%8)*2+j)*640
    base = [0]
    def rdK(t):
        a.ds(f"ds_read_b128 {v(vK1[t&1],4)}, v{vAK} offset:{koff(t)-base[0]}", ("k",t))
        if t%4==0: a.ds(f"ds_read_b128 {v(vKR[(t//4)&1],4)}, v{vAR} offset:{roff(t)-base[0]}", ("k",t))
    def rdV(t):
        a.ds(f"ds_read_b128 {v(vV[t&1],4)}, v{vAV} offset:{voff(t,0)-base[0]}", ("v",t))
        a.ds(f"ds_read_b128 {v(vV[t&1]+4,4)}, v{vAV} offset:{voff(t,1)-base[0]}", ("v",t))
    NT = 32
    def S1(u):
        t,q = u//2,u%2
        a(f"v_mfma_f32_32x32x16_bf16 {v(vS[u&1],16)}, {v(vK1[t&1],4)}, {v(vQ1[q],4)}, {v(vNM[q],16)}")
    def S2(u):
        t,q = u//2,u%2; i=t%4
        a(f"v_mfma_f32_32x32x8_bf16 {v(vS[u&1],16)}, {v(vKR[(t//4)&1]+(i&2),2)}, {v(vQ2[q]+2*(i&1),2)}, {v(vS[u&1],16)}")
    def PV(u,j):
        t,q = u//2,u%2
        a(f"v_mfma_f32_32x32x16_bf16 {v(vO[q],16)}, {v(vV[t&1]+4*j,4)}, {v(vP+4*j,4)}, {v(vO[q],16)}")
    kv_loads(0)
    rdK(0); rdV(0); rdK(1)
    a.wait_lg(("k",0))
    S1(0); S2(0)
    a("s_nop 7\ns_nop 3")
    NU = 2*NT
    for u in range(NU):
        t,q = u//2,u%2
        cur = vS[u&1]
        E = lambda i: a(f"v_exp_f32 v{cur+i}, v{cur+i}")
        C = lambda p: a(f"v_cvt_pk_bf16_f32 v{vP+p}, v{cur+2*p}, v{cur+2*p+1}")
        def G(g):
            for i in range(4*g,4*g+4): E(i)
            C(2*g); C(2*g+1)
        if q == 0 and t == 16:
            for r in (vAK, vAR, vAV): a(f"v_add_u32 v{r}, {2*CH}, v{r}")
            base[0] += 2*CH
        if q == 0:
            if (t+2) % 8 == 0 and t+2 < NT:
                s_ = (t+2)//8
                a.wait_vm(("dma", NST[s_]-1))
                a("s_barrier")
                if s_+1 <= 3: dma_to(NST[s_+1])
            if t % 3 == 0 and 1 <= t//3 <= 8:
                i = t//3
                a.wait_vm(("kv", i-1))
                kv_mfma()
                if i <= 7: kv_loads(i)
        if u+1 < NU:
            tn = (u+1)//2
            a.wait_lg(("k", tn))
            S1(u+1)
        G(0)
        if u > 0: PV(u-1, 1)
        if q == 0:
            if t+1 < NT: rdV(t+1)
        else:
            if t+2 < NT: rdK(t+2)
        G(1)
        if u+1 < NU: S2(u+1)
        G(2)
        a.wait_lg(("v", t))
        PV(u, 0)
        G(3)
    a("s_nop 1")
    PV(NU-1, 1)
    stamp()
    a("s_nop 7\ns_nop 3")
    a("s_barrier")
    a(f"s_mul_i32 s{sT0}, s{sW}, 3072\nv_add_u32 v{vT0}, s{sT0}, v{vOffQ}")
    a(f"s_cmp_eq_u32 s{sHalf}, 0\ns_cbranch_scc1 {name}_h0")
    for qd in range(3): a(f"ds_write_b128 v{vT0}, {v(vO[0]+4*qd,4)} offset:{1024*qd}")
    a("s_waitcnt lgkmcnt(0)")
    for i in range(12): a(f"v_mov_b32 v{vO[0]+i}, v{vO[1]+i}")
    a(f"s_branch {name}_h1\n{name}_h0:")
    for qd in range(3): a(f"ds_write_b128 v{vT0}, {v(vO[1]+4*qd,4)} offset:{1024*qd}")
    a(f"{name}_h1:")
    for qd in range(3): a(f"ds_write_b128 v{vT0}, {v(vKV+4*qd,4)} offset:{32768+1024*qd}")
    a("s_waitcnt lgkmcnt(0)\ns_barrier")
    a(f"s_xor_b32 s{sT1}, s{sW}, 4\ns_mul_i32 s{sT1}, s{sT1}, 3072\nv_add_u32 v{vT1}, s{sT1}, v{vOffQ}")
    for qd in range(3): a(f"ds_read_b128 {v(vS[0]+4*qd,4)}, v{vT1} offset:{1024*qd}")
    for qd in range(3):
        for w in range(4): a(f"ds_read_b128 {v(vS[1]+4*w,4)}, v{vOffQ} offset:{32768+w*3072+qd*1024}")
        for w in range(4): a(f"ds_read_b128 {v(vNM[0]+4*w,4)}, v{vOffQ} offset:{32768+(w+4)*3072+qd*1024}")
        a("s_waitcnt lgkmcnt(0)")
        if qd == 0:
            for i in range(12): a(f"v_add_f32 v{vO[0]+i}, v{vO[0]+i}, v{vS[0]+i}")
        for i in range(4):
            a(f"v_add_f32 v{vS[1]+i}, v{vS[1]+i}, v{vS[1]+4+i}")
            a(f"v_add_f32 v{vS[1]+8+i}, v{vS[1]+8+i}, v{vS[1]+12+i}")
            a(f"v_add_f32 v{vNM[0]+i}, v{vNM[0]+i}, v{vNM[0]+4+i}")
            a(f"v_add_f32 v{vNM[0]+8+i}, v{vNM[0]+8+i}, v{vNM[0]+12+i}")
        for i in range(4):
            a(f"v_add_f32 v{vS[1]+i}, v{vS[1]+i}, v{vS[1]+8+i}")
            a(f"v_add_f32 v{vNM[0]+i}, v{vNM[0]+i}, v{vNM[0]+8+i}")
        for i in range(4):
            a(f"v_add_f32 v{vKV+4*qd+i}, v{vS[1]+i}, v{vNM[0]+i}")
    def norm_store(acc, offM, offR, eps):
        a(f"v_mov_b32 v{vT0}, v{acc+10}\nv_mov_b32 v{vT1}, v{acc+10}\ns_nop 1")
        a(f"v_permlane32_swap_b32 v{vT0}, v{vT1}\ns_nop 1")
        if eps: a(f"v_add_f32 v{vT0}, 0x358637bd, v{vT0}")
        a(f"v_rcp_f32 v{vT0}, v{vT0}\ns_nop 0")
        for i in range(10): a(f"v_mul_f32 v{acc+i}, v{acc+i}, v{vT0}")
        for p in range(5): a(f"v_cvt_pk_bf16_f32 v{vP+p}, v{acc+2*p}, v{acc+2*p+1}")
        a(f"s_add_u32 s{sT0}, s{sOM}, {offM}\ns_add_u32 s{sT1}, s{sOR}, {offR}")
        a.vmem(f"buffer_store_dwordx4 {v(vP,4)}, v{vOffQ}, s[8:11], s{sT0} offen", "st")
        a.vmem(f"buffer_store_dword v{vP+4}, v{vOffR}, s[8:11], s{sT1} offen", "st")
    for p in range(4): a(f"v_cvt_pk_bf16_f32 v{vK1[0]+p}, v{vKV+2*p}, v{vKV+2*p+1}")
    a(f"v_cvt_pk_bf16_f32 v{vT0}, v{vKV+8}, v{vKV+9}")
    a(f"v_cmp_gt_u32 vcc, 32, v{vLane}")
    a.wait_vm("pq")
    a(f"""
    v_mov_b32 v{vKR[0]+1}, 0
    v_mov_b32 v{vPQ2+1}, 0
    v_cndmask_b32 v{vKR[0]}, 0, v{vT0}, vcc
    v_cndmask_b32 v{vPQ2}, 0, v{vPQ2}, vcc
    s_nop 1
    v_mfma_f32_32x32x16_bf16 {v(vO[1],16)}, {v(vK1[0],4)}, {v(vPQ1,4)}, 0
    v_mfma_f32_32x32x8_bf16 {v(vO[1],16)}, {v(vKR[0],2)}, {v(vPQ2,2)}, {v(vO[1],16)}
    """)
    norm_store(vO[0], OFF_OBM, OFF_OBR, False)
    a("s_nop 3")
    vPsave = vP
    a("s_waitcnt vmcnt(0)")
    a.vm=[]
    norm_store(vO[1], OFF_OAM, OFF_OAR, True)
    if stamps:
        a("s_waitcnt vmcnt(0)")
        stamp()
        a("s_memrealtime s[62:63]")
        a("s_waitcnt lgkmcnt(0)")
        a(f"s_lshl_b32 s{sT0}, s2, 3\ns_add_u32 s{sT0}, s{sT0}, s{sW}\ns_lshl_b32 s{sT0}, s{sT0}, 5\ns_add_u32 s{sT0}, s{sT0}, 0x2000000")
        a("s_mov_b32 s10, 0x4000000")
        for i in range(1,nst[0]):
            a(f"s_sub_u32 s{40+2*i}, s{40+2*i}, s40")
        a("v_mov_b32 v2, s60\nv_mov_b32 v3, s42\nv_mov_b32 v4, s44\nv_mov_b32 v5, s46\nv_mov_b32 v6, s48\nv_mov_b32 v7, s62\nv_mov_b32 v8, 0\nv_mov_b32 v9, 0")
        a(f"v_mov_b32 v10, 0")
        a(f"buffer_store_dwordx4 v[2:5], v10, s[8:11], s{sT0} offen")
        a(f"buffer_store_dwordx4 v[6:9], v10, s[8:11], s{sT0} offen offset:16")
    a(f"{name}_end:\ns_endpgm")
    return kernel_head(name) + a.text() + kernel_desc(name, NV)
```

```python
from asmlib import *
from model import *
LDS_K3 = 2*73728
def gen_k3(name="k3_kernel"):
    a = Asm()
    vLane,vT0,vT1,vT2,vT3,vTok,vHf,vL16 = 1,2,3,4,5,6,7,8
    vWR, vWR2, vG = 9, 10, 11
    vWF = [12,16]
    vD = 32
    vOM = 48
    vOR = 176
    NV = 192
    sW,sBr,sRt,sCt,sRow,sCol,sT0,sT1,sT2,sT3 = 20,21,22,23,24,25,26,27,28,29
    sQt = 30
    a(f"""
    s_cmp_ge_u32 s2, 288
    s_cbranch_scc1 {name}_end
    s_load_dwordx2 s[4:5], s[0:1], 16
    s_load_dwordx2 s[6:7], s[0:1], 40
    s_load_dwordx2 s[16:17], s[0:1], 56
    s_load_dwordx2 s[18:19], s[0:1], 72
    v_lshrrev_b32 v{vT0}, 6, v0
    v_and_b32 v{vLane}, 63, v0
    v_readfirstlane_b32 s{sW}, v{vT0}
    v_lshlrev_b32 v{vL16}, 4, v{vLane}
    v_and_b32 v{vTok}, 31, v{vLane}
    v_lshrrev_b32 v{vHf}, 5, v{vLane}
    s_mul_i32 s{sT0}, s2, 7282
    s_lshr_b32 s{sRow}, s{sT0}, 16        ; s2/9
    s_mul_i32 s{sT0}, s{sRow}, 9
    s_sub_u32 s{sCol}, s2, s{sT0}
    s_lshr_b32 s{sBr}, s{sW}, 2
    s_lshr_b32 s{sRt}, s{sW}, 1
    s_and_b32 s{sRt}, s{sRt}, 1
    s_and_b32 s{sCt}, s{sW}, 1
    s_lshl_b32 s{sQt}, s{sRow}, 1
    s_add_u32 s{sQt}, s{sQt}, s{sRt}
    s_waitcnt lgkmcnt(0)
    """)
    a(f"""
    s_cmp_eq_u32 s{sBr}, 0
    s_cselect_b32 s8, s4, s6
    s_cselect_b32 s9, s5, s7
    s_mov_b32 s10, {576*576*2}
    s_mov_b32 s11, 0x00020000
    s_mov_b32 s12, s18
    s_mov_b32 s13, s19
    s_mov_b32 s14, {WS_END}
    s_mov_b32 s15, 0x00020000
    s_mov_b32 s32, s16
    s_mov_b32 s33, s17
    s_mov_b32 s34, {S*D*2}
    s_mov_b32 s35, 0x00020000
    """)
    a(f"""
    s_cmp_eq_u32 s{sBr}, 0
    s_cselect_b32 s{sT0}, {OFF_OAM}, 0
    s_cselect_b32 s{sT1}, 0, {OFF_OBM}
    s_add_u32 s{sT0}, s{sT0}, s{sT1}
    s_lshl_b32 s{sT1}, s{sQt}, 10
    s_add_u32 s{sT0}, s{sT0}, s{sT1}
    """)
    a(f"""
    v_lshrrev_b32 v{vT0}, 3, v{vLane}
    v_and_b32 v{vT1}, 7, v{vLane}
    v_lshrrev_b32 v{vT2}, 1, v{vT0}
    v_and_b32 v{vT2}, 1, v{vT2}
    v_lshlrev_b32 v{vT2}, 2, v{vT2}
    v_xor_b32 v{vT1}, v{vT1}, v{vT2}
    v_lshlrev_b32 v{vT1}, 4, v{vT1}
    v_mul_u32_u24 v{vT0}, 1152, v{vT0}
    v_add_u32 v{vT0}, v{vT0}, v{vT1}
    s_lshl_b32 s{sT1}, s{sCol}, 7
    s_and_b32 s{sT2}, s{sW}, 3
    s_mul_i32 s{sT3}, s{sT2}, {8*1152}
    s_add_u32 s{sT1}, s{sT1}, s{sT3}          ; soffset
    s_mul_i32 s{sT3}, s{sBr}, 73728
    s_lshl_b32 s{sT2}, s{sT2}, 10
    s_add_u32 s{sT2}, s{sT2}, s{sT3}          ; m0
    """)
    for i in range(18):
        a(f"s_mov_b32 m0, s{sT2}\ns_add_u32 s{sT2}, s{sT2}, 4096")
        a(f"buffer_load_dwordx4 v{vT0}, s[8:11], s{sT1} offen lds")
        a(f"s_add_u32 s{sT1}, s{sT1}, {32*1152}")
    for h in range(32):
        a(f"buffer_load_dwordx4 {v(vOM+4*h,4)}, v{vL16}, s[12:15], s{sT0} offen")
        a(f"s_add_u32 s{sT0}, s{sT0}, 65536")
    a(f"""
    s_cmp_eq_u32 s{sBr}, 0
    s_cselect_b32 s{sT0}, {OFF_OAR}, 0
    s_cselect_b32 s{sT1}, 0, {OFF_OBR}
    s_add_u32 s{sT0}, s{sT0}, s{sT1}
    s_lshl_b32 s{sT1}, s{sQt}, 7
    s_add_u32 s{sT0}, s{sT0}, s{sT1}
    v_lshlrev_b32 v{vT1}, 2, v{vTok}
    v_lshlrev_b32 v{vT2}, 15, v{vHf}
    v_add_u32 v{vT1}, v{vT1}, v{vT2}
    """)
    for j in range(4):
        for i in range(4):
            a(f"s_add_u32 s{sT1}, s{sT0}, {(8*j+i)*8192}")
            a(f"buffer_load_dword v{vOR+4*j+i}, v{vT1}, s[12:15], s{sT1} offen")
    a(f"""
    s_lshl_b32 s{sT1}, s{sQt}, 7
    s_add_u32 s{sT1}, s{sT1}, {OFF_G}
    v_lshlrev_b32 v{vT2}, 2, v{vTok}
    buffer_load_dword v{vG}, v{vT2}, s[12:15], s{sT1} offen
    """)
    a(f"""
    v_lshrrev_b32 v{vT0}, 4, v{vLane}
    v_and_b32 v{vT1}, 1, v{vT0}            ; mhalf
    v_lshrrev_b32 v{vT0}, 1, v{vT0}        ; khalf
    v_and_b32 v{vT2}, 15, v{vLane}
    v_lshrrev_b32 v{vT3}, 2, v{vT2}        ; r
    v_and_b32 v{vT2}, 3, v{vT2}            ; cq
    v_lshlrev_b32 v{vT1}, 5, v{vT1}
    v_lshlrev_b32 v{vT2}, 3, v{vT2}
    v_add_u32 v{vT1}, v{vT1}, v{vT2}
    v_lshrrev_b32 v{vT2}, 1, v{vT3}
    v_xor_b32 v{vT2}, s{sCt}, v{vT2}
    v_lshlrev_b32 v{vT2}, 6, v{vT2}
    v_add_u32 v{vT1}, v{vT1}, v{vT2}
    v_lshlrev_b32 v{vT2}, 7, v{vT3}
    v_add_u32 v{vT1}, v{vT1}, v{vT2}       ; + r*128
    s_mul_i32 s{sT0}, s{sBr}, 73728
    v_add_u32 v{vT1}, s{sT0}, v{vT1}
    v_lshlrev_b32 v{vT2}, 9, v{vT0}        ; 4*khalf*128
    v_add_u32 v{vWR}, v{vT1}, v{vT2}
    v_mul_u32_u24 v{vT2}, {4*18*128}, v{vT0}
    v_add_u32 v{vWR2}, v{vT1}, v{vT2}
    """)
    for i in range(16): a(f"v_mov_b32 v{vD+i}, 0")
    a("s_waitcnt vmcnt(0)\ns_barrier")
    steps = []
    for h in range(32):
        off = 0 if h%2==0 else 2
        steps.append((vWR, [(18*h+off+8*u)*128 for u in range(2)], v(vOM+4*h,4)))
    for j in range(4):
        steps.append((vWR2, [(18*(8*j+2*u)+16)*128 for u in range(2)], v(vOR+4*j,4)))
    bump = {vWR:0, vWR2:0}
    def rd(k):
        reg, offs, _ = steps[k]
        while offs[1]-bump[reg] > 65000:
            a(f"v_add_u32 v{reg}, 32768, v{reg}"); bump[reg]+=32768
        for u in range(2):
            a(f"ds_read_b64_tr_b16 {v(vWF[k&1]+2*u,2)}, v{reg} offset:{offs[u]-bump[reg]}")
    rd(0)
    for k in range(36):
        if k+1 < 36:
            rd(k+1); a("s_waitcnt lgkmcnt(2)")
        else: a("s_waitcnt lgkmcnt(0)")
        a(f"v_mfma_f32_32x32x16_bf16 {v(vD,16)}, {v(vWF[k&1],4)}, {steps[k][2]}, {v(vD,16)}")
    a("s_nop 15\ns_nop 3")
    a(f"""
    v_sub_f32 v{vT0}, 1.0, v{vG}
    s_cmp_eq_u32 s{sBr}, 0
    s_cselect_b64 vcc, -1, 0
    s_nop 1
    v_cndmask_b32 v{vG}, v{vT0}, v{vG}, vcc
    """)
    for i in range(16): a(f"v_mul_f32 v{vD+i}, v{vD+i}, v{vG}")
    a("s_barrier")
    a(f"s_and_b32 s{sT0}, s{sW}, 3\ns_lshl_b32 s{sT0}, s{sT0}, 12\nv_add_u32 v{vT0}, s{sT0}, v{vL16}")
    a(f"s_cmp_eq_u32 s{sBr}, 0\ns_cbranch_scc1 {name}_a")
    for q in range(4): a(f"ds_write_b128 v{vT0}, {v(vD+4*q,4)} offset:{1024*q}")
    a(f"s_waitcnt lgkmcnt(0)\ns_barrier\ns_endpgm\n{name}_a:\ns_barrier")
    for q in range(4): a(f"ds_read_b128 {v(vOM+4*q,4)}, v{vT0} offset:{1024*q}")
    a("s_waitcnt lgkmcnt(0)")
    for i in range(16): a(f"v_add_f32 v{vD+i}, v{vD+i}, v{vOM+i}")
    for p in range(8): a(f"v_cvt_pk_bf16_f32 v{vOM+p}, v{vD+2*p}, v{vD+2*p+1}")
    a(f"""
    s_lshl_b32 s{sT0}, s{sQt}, 5
    v_add_u32 v{vT0}, s{sT0}, v{vTok}
    v_mul_u32_u24 v{vT0}, 1152, v{vT0}
    v_lshlrev_b32 v{vT1}, 3, v{vHf}
    v_add_u32 v{vT0}, v{vT0}, v{vT1}
    s_lshl_b32 s{sT0}, s{sCol}, 7
    s_lshl_b32 s{sT1}, s{sCt}, 6
    s_add_u32 s{sT0}, s{sT0}, s{sT1}
    """)
    for q in range(4):
        a(f"buffer_store_dwordx2 {v(vOM+2*q,2)}, v{vT0}, s[32:35], s{sT0} offen offset:{16*q}")
    a(f"{name}_end:\ns_endpgm")
    return kernel_head(name) + a.text() + kernel_desc(name, NV)
```

```python
import numpy as np
S=2048; D=576; H=32; DH=18
def bf16(x):
    x = np.ascontiguousarray(x, np.float32)
    u = x.view(np.uint32)
    return ((u + 0x7fff + ((u>>16)&1))>>16).astype(np.uint16)
def unbf16(u):
    return (np.ascontiguousarray(u,np.uint16).astype(np.uint32)<<16).view(np.float32)
def rb(x): return unbf16(bf16(x))
CH = 19456
OFF_QBM = 0
OFF_QBR = OFF_QBM + 32*64*1024
OFF_KVB = OFF_QBR + 32*2048*4
OFF_PQM = OFF_KVB + 32*8*CH
OFF_PQR = OFF_PQM + 32*64*1024
OFF_PK  = OFF_PQR + 32*2048*4
OFF_VA  = OFF_PK + 32*128*640 + 1024
OFF_KM  = OFF_VA + 32*128*640 + 1024
OFF_G   = OFF_KM + 32*64*2*4
OFF_OAM = OFF_G + 2048*4
OFF_OAR = OFF_OAM + 32*64*1024
OFF_OBM = OFF_OAR + 32*2048*4
OFF_OBR = OFF_OBM + 32*64*1024
WS_END  = OFF_OBR + 32*2048*4
def md(h): return list(range(16)) if h%2==0 else list(range(2,18))
def rd(h): return [16,17] if h%2==0 else [0,1]
def mi(hf,j): return 4*hf+j if j<4 else 8+4*hf+(j-4)
MI = np.array([[mi(hf,j) for j in range(8)] for hf in range(2)])
def rho_dims(h): return md(h)+rd(h)
QSCALE = np.float32(np.log2(np.e)/np.sqrt(18.0))
def qtype_main(t):
    out = np.zeros((H,64,64,8),np.uint16)
    tb = bf16(t)
    for h in range(H):
        m = np.array(md(h))
        for hf in range(2):
            out[h,:,hf*32:(hf+1)*32,:] = tb[:,h,:][:, m[MI[hf]]].reshape(64,32,8)
    return out
def qtype_rem(t):
    out = np.zeros((H,S,2),np.uint16)
    tb = bf16(t)
    for h in range(H):
        out[h] = tb[:,h,:][:, rd(h)]
    return out
def vtype(t, ones):
    out = np.zeros((H,128,2,20,8),np.uint16)
    tb = bf16(t)
    for h in range(H):
        rr = rho_dims(h)
        tt = tb[:,h,:][:, rr]
        tt = tt.reshape(128,16,18)
        for hf in range(2):
            out[h,:,hf,:18,:] = tt[:, MI[hf], :].transpose(0,2,1)
        if ones: out[h,:,:,18,:] = 0x3f80
    return out
def phi(t):
    return np.where(t>0, t+1, np.exp(np.minimum(t,0))) + 1e-6
def compute_qkv(x, w):
    y = x @ w
    y = y.reshape(S,3,H,DH)
    return y[:,0], y[:,1], y[:,2]
def build_ws(x, wA, wB, gw):
    ws = np.zeros(WS_END, np.uint8)
    def put(off, arr):
        b = np.ascontiguousarray(arr).view(np.uint8).ravel(); ws[off:off+b.size] = b
    qB,kB,vB = compute_qkv(x,wB); qA,kA,vA = compute_qkv(x,wA)
    put(OFF_QBM, qtype_main(qB*QSCALE)); put(OFF_QBR, qtype_rem(qB*QSCALE))
    km = qtype_main(kB); kr = qtype_rem(kB); vv = vtype(vB, True)
    kvb = np.zeros((H,8,CH),np.uint8)
    for h in range(H):
        for c in range(8):
            kvb[h,c,:8192] = km[h,8*c:8*c+8].view(np.uint8).ravel()
            kvb[h,c,8192:9216] = kr[h,256*c:256*(c+1)].view(np.uint8).ravel()
            kvb[h,c,9216:] = vv[h,16*c:16*c+16].view(np.uint8).ravel()
    put(OFF_KVB, kvb)
    pq = phi(qA); pk = phi(kA)
    put(OFF_PQM, qtype_main(pq)); put(OFF_PQR, qtype_rem(pq))
    put(OFF_PK, vtype(pk, False)); put(OFF_VA, vtype(vA, True))
    kmx = np.zeros((H,64,2),np.float32)
    for h in range(H):
        kk = kB[:,h,:]
        kmx[h,:,0] = (kk[:,md(h)]**2).sum(1).reshape(64,32).max(1)
        kmx[h,:,1] = (kk[:,rd(h)]**2).sum(1).reshape(64,32).max(1)
    put(OFF_KM, kmx)
    z = x @ gw
    g = 1/(1+np.exp(-z))
    put(OFF_G, g.astype(np.float32))
    return ws, dict(qB=qB,kB=kB,vB=vB,qA=qA,kA=kA,vA=vA,g=g,pq=pq,pk=pk)
def o_layout(o):
    return qtype_main(o), qtype_rem(o)
def o_from_layout(m, r):
    o = np.zeros((S,H,DH),np.float32)
    m = unbf16(m).reshape(H,64,64,8); r = unbf16(r).reshape(H,S,2)
    for h in range(H):
        mm = np.array(md(h))
        for hf in range(2):
            o[:,h,mm[MI[hf]]] = m[h,:,hf*32:(hf+1)*32,:].reshape(S,8)
        o[:,h,rd(h)] = r[h]
    return o
def attn_ref(q,k,v):
    o = np.zeros((S,H,DH),np.float32)
    for h in range(H):
        s = (q[:,h,:] @ k[:,h,:].T) * np.float32(18**-0.5)
        s -= s.max(1,keepdims=True)
        p = np.exp(s); p /= p.sum(1,keepdims=True)
        o[:,h,:] = p @ v[:,h,:]
    return o
def lin_ref(pq,pk,v):
    o = np.zeros((S,H,DH),np.float32)
    for h in range(H):
        kv = pk[:,h,:].T @ v[:,h,:]; z = pk[:,h,:].sum(0)
        o[:,h,:] = (pq[:,h,:]@kv)/((pq[:,h,:]@z)[:,None]+1e-6)
    return o
def wo_rowmap_main(h):
    m = np.array(md(h)); return 18*h + m[MI]
if __name__=="__main__":
    print("WS_END", WS_END, hex(WS_END))
    for n in ("OFF_QBM","OFF_QBR","OFF_KVB","OFF_PQM","OFF_PQR","OFF_PK","OFF_VA","OFF_KM","OFF_G","OFF_OAM","OFF_OAR","OFF_OBM","OFF_OBR"):
        print(n, globals()[n], hex(globals()[n]))
```

```python
import sys
sys.path.insert(0,'dev')
from k1 import gen_k1, LDS_K1
from k2 import gen_k2, LDS_K2
from k3 import gen_k3, LDS_K3
ref = open('gated_mix__linear_attn_block__mha_block__prompt.s.ref').read().split("\n")
hdr = [l for l in ref if l.startswith(";") and "@launch" not in l and "Override" not in l and "grid=ceil" not in l]
hdr = hdr[:12]
def build(path):
    src = "\n".join(hdr) + f"""
; @launch kernel=k1_kernel grid=(256,1,1) block=(512,1,1) lds={LDS_K1}
; @launch kernel=k2_kernel grid=(256,1,1) block=(512,1,1) lds={LDS_K2}
; @launch kernel=k3_kernel grid=(288,1,1) block=(512,1,1) lds={LDS_K3}
.amdgcn_target "amdgcn-amd-amdhsa--gfx950"
.text
""" + gen_k1() + gen_k2() + gen_k3()
    open(path,"w").write(src)
    return src
if __name__=="__main__":
    build(sys.argv[1] if len(sys.argv)>1 else "gated_mix__linear_attn_block__mha_block__prompt.s")
```

```python
from asmlib import *
from model import *
SLOT = 49152
LDS_K1D = 3*SLOT
HS_KVB = 8*CH
HS_V = 128*640
LOG2E = 0x3fb8aa3b
QSC = int(np.float32(QSCALE).view(np.uint32))
EPS = 0x358637bd
BIG = 0x7f000000
def jt_params(jt):
    if jt < 5: return (0, 432*jt, 216, 8, 0)
    if jt == 5: return (0, 2160, 72, 3, 0)
    if jt < 8: return (1, 432*jt-2304, 216, 8, 0)
    if jt < 10: return (0, 2304+432*(jt-8), 216, 8, 0)
    if jt == 10: return (0, 3168, 144, 5, 1152)
    return (1, 432*(jt-8), 216, 8, 0)
class QKV:
    def __init__(self, a, name, sc=""):
        self.a=a; self.name=name; self.sc=sc; self.dbg=""
        s=self
        s.vLane,s.vT0,s.vT1,s.vT2,s.vT3,s.vT4,s.vT5 = 1,2,3,4,5,6,7
        s.vWG = 8
        s.vXG = 10
        s.vGD, s.vGW, s.vGA = 11, 26, 27
        s.vWR = [12,13,14,15]
        s.vXR = [16,17,18,19]
        s.vL16,s.vTok,s.vHf,s.vL4 = 20,21,22,23
        s.vXF = [28, 32]
        s.vWF = [36, 52]
        s.vD = 68
        s.vE = 132
        s.NV = 148
        s.sR,s.sJt,s.sW,s.sRt,s.sCh,s.sT32 = 22,23,24,25,26,27
        s.sT0,s.sT1,s.sT2,s.sT3,s.sT4 = 28,29,30,31,32
        s.sM,s.sSlot,s.sSlotM,s.sXoff,s.sCn,s.sC,s.sDm = 33,34,35,36,37,38,39
        s.sMask = 40
        s.sMask2 = 70
        s.sJ8,s.sIsV = 42,43
        s.sMat1,s.sS1,s.sSplit,s.sN1,s.sS2 = 44,45,46,47,48
        s.sKind,s.sHead,s.sBase = 49,64,65
        s.sWA, s.sWB = 16, 18
    def st(self, instr):
        if "nost" in self.dbg: return
        self.a(instr + (" "+self.sc if self.sc else ""))
    def setup(self):
        a=self.a; s=self
        vLane,vT0,vT1,vT2,vT3,vT4,vT5 = s.vLane,s.vT0,s.vT1,s.vT2,s.vT3,s.vT4,s.vT5
        a(f"""
        s_and_b32 s{s.sT0}, s2, 7
        s_lshr_b32 s{s.sT1}, s2, 3
        s_and_b32 s{s.sR}, s{s.sT0}, 1
        s_lshl_b32 s{s.sR}, s{s.sR}, 3
        s_and_b32 s{s.sT2}, s{s.sT1}, 7
        s_add_u32 s{s.sR}, s{s.sR}, s{s.sT2}
        s_lshr_b32 s{s.sJt}, s{s.sT0}, 1
        s_lshl_b32 s{s.sJt}, s{s.sJt}, 2
        s_lshr_b32 s{s.sT2}, s{s.sT1}, 3
        s_add_u32 s{s.sJt}, s{s.sJt}, s{s.sT2}
        s_and_b32 s{s.sJ8}, s{s.sJt}, 7
        s_lshr_b32 s{s.sIsV}, s{s.sJt}, 3
        v_lshrrev_b32 v{vT0}, 6, v0
        v_and_b32 v{vLane}, 63, v0
        v_readfirstlane_b32 s{s.sW}, v{vT0}
        v_lshlrev_b32 v{s.vL16}, 4, v{vLane}
        v_and_b32 v{s.vTok}, 31, v{vLane}
        v_lshrrev_b32 v{s.vHf}, 5, v{vLane}
        v_lshlrev_b32 v{s.vL4}, 2, v{s.vTok}
        s_and_b32 s{s.sRt}, s{s.sW}, 3
        s_lshr_b32 s{s.sCh}, s{s.sW}, 2
        s_lshl_b32 s{s.sT32}, s{s.sR}, 2
        s_add_u32 s{s.sT32}, s{s.sT32}, s{s.sRt}
        """)
        a(f"""
        v_lshrrev_b32 v{vT0}, 3, v{vLane}
        s_lshl_b32 s{s.sT0}, s{s.sW}, 3
        v_add_u32 v{vT0}, s{s.sT0}, v{vT0}
        v_lshrrev_b32 v{vT1}, 1, v{vT0}
        v_and_b32 v{vT1}, 7, v{vT1}
        v_and_b32 v{vT2}, 7, v{vLane}
        v_xor_b32 v{vT1}, v{vT1}, v{vT2}
        v_lshlrev_b32 v{vT1}, 4, v{vT1}
        s_lshl_b32 s{s.sT0}, s{s.sR}, 7
        v_add_u32 v{vT0}, s{s.sT0}, v{vT0}
        v_mul_u32_u24 v{vT0}, 1152, v{vT0}
        v_add_u32 v{s.vXG}, v{vT0}, v{vT1}
        s_lshl_b32 s{s.sM}, s{s.sW}, 10
        """)
        a(f"""
        s_mul_i32 s{s.sS1}, s{s.sJ8}, 432
        s_mov_b32 s{s.sSplit}, 216
        s_mov_b32 s{s.sN1}, 8
        s_mov_b32 s{s.sS2}, 0
        s_mov_b32 s{s.sMat1}, 0
        s_cmp_eq_u32 s{s.sIsV}, 0
        s_cbranch_scc0 {s.name}_pv
        s_cmp_gt_u32 s{s.sJ8}, 5
        s_cbranch_scc0 {s.name}_pq1
        s_sub_u32 s{s.sS1}, s{s.sS1}, 2304
        s_mov_b32 s{s.sMat1}, 1
        s_branch {s.name}_pd
        {s.name}_pq1:
        s_cmp_eq_u32 s{s.sJ8}, 5
        s_cbranch_scc0 {s.name}_pd
        s_mov_b32 s{s.sSplit}, 72
        s_mov_b32 s{s.sN1}, 3
        s_branch {s.name}_pd
        {s.name}_pv:
        s_cmp_gt_u32 s{s.sJ8}, 2
        s_cbranch_scc0 {s.name}_pv1
        s_mov_b32 s{s.sMat1}, 1
        s_branch {s.name}_pd
        {s.name}_pv1:
        s_add_u32 s{s.sS1}, s{s.sS1}, 2304
        s_cmp_eq_u32 s{s.sJ8}, 2
        s_cbranch_scc0 {s.name}_pd
        s_mov_b32 s{s.sSplit}, 144
        s_mov_b32 s{s.sN1}, 5
        s_mov_b32 s{s.sS2}, 1152
        {s.name}_pd:
        """)
    def setup_w(self):
        a=self.a; s=self
        vLane,vT0,vT1,vT2,vT3,vT4,vT5 = s.vLane,s.vT0,s.vT1,s.vT2,s.vT3,s.vT4,s.vT5
        a(f"""
        s_lshl_b32 s{s.sT0}, s{s.sW}, 1
        v_add_u32 v{vT0}, s{s.sT0}, v{s.vHf}
        v_and_b32 v{vT1}, 3, v{vT0}
        v_lshrrev_b32 v{vT2}, 2, v{s.vTok}
        v_xor_b32 v{vT1}, v{vT2}, v{vT1}
        v_and_b32 v{vT2}, 3, v{s.vTok}
        v_lshlrev_b32 v{vT2}, 4, v{vT2}
        v_lshlrev_b32 v{vT3}, 6, v{vT1}
        v_add_u32 v{vT3}, v{vT3}, v{vT2}
        v_mov_b32 v{vT4}, 496
        v_cmp_ne_u32 s[{s.sMask}:{s.sMask+1}], v{vT3}, v{vT4}
        s_andn2_b32 s{s.sT0}, s{s.sS1}, 63
        s_lshl_b32 s{s.sT1}, s{s.sN1}, 6
        s_sub_u32 s{s.sT2}, s{s.sS2}, s{s.sT1}
        v_add_u32 v{vT4}, s{s.sT0}, v{vT3}
        v_add_u32 v{vT5}, s{s.sT2}, v{vT3}
        v_cmp_gt_u32 vcc, s{s.sN1}, v{vT1}
        s_nop 1
        v_cndmask_b32 v{vT4}, v{vT5}, v{vT4}, vcc
        v_min_u32 v{vT4}, 3440, v{vT4}
        v_mul_u32_u24 v{vT5}, 3456, v{vT0}
        v_add_u32 v{vT4}, v{vT4}, v{vT5}
        s_cmp_eq_u32 s{s.sMat1}, 0
        s_cselect_b32 s{s.sT0}, s{s.sWB}, s{s.sWA}
        s_cselect_b32 s{s.sT1}, s{s.sWB+1}, s{s.sWA+1}
        v_mov_b32 v{vT5}, s{s.sWA}
        v_mov_b32 v{vT3}, s{s.sT0}
        v_cndmask_b32 v{s.vWG}, v{vT5}, v{vT3}, vcc
        v_mov_b32 v{vT5}, s{s.sWA+1}
        v_mov_b32 v{vT3}, s{s.sT1}
        v_cndmask_b32 v{s.vWG+1}, v{vT5}, v{vT3}, vcc
        v_add_co_u32 v{s.vWG}, vcc, v{s.vWG}, v{vT4}
        s_nop 1
        v_addc_co_u32 v{s.vWG+1}, vcc, 0, v{s.vWG+1}, vcc
        v_and_b32 v{vT0}, 3, v{vLane}
        v_xor_b32 v{vT0}, 7, v{vT0}
        v_lshlrev_b32 v{vT0}, 6, v{vT0}
        v_lshlrev_b32 v{vT1}, 9, v{vLane}
        v_add_u32 v{vT0}, v{vT0}, v{vT1}
        v_add_u32 v{s.vGD}, 48, v{vT0}
        """)
    def dma(self, item, slot, pro=False):
        a=self.a; s=self
        k, i = item[0], int(item[1])
        if not pro and ("no"+k+"dma") in s.dbg:
            a("buffer_load_dword v3, v20, s[8:11], 0 offen"); return
        if k == 'x':
            a(f"s_add_u32 m0, s{s.sM}, {slot + 32768 + i*8192}")
            if i: a(f"s_add_u32 s{s.sT0}, s{s.sXoff}, 73728")
            else: a("s_nop 0")
            a(f"buffer_load_dwordx4 v{s.vXG}, s[8:11], s{s.sT0 if i else s.sXoff} offen lds")
        else:
            a(f"s_add_u32 m0, s{s.sM}, {slot + i*8192}")
            a(f"s_mov_b64 exec, s[{s.sMask}:{s.sMask+1}]")
            a(f"global_load_lds_dwordx4 {v(s.vWG,2)}, off")
            a("s_mov_b64 exec, -1")
            a(f"v_add_co_u32 v{s.vWG}, vcc, 0xd800, v{s.vWG}")
            a(f"s_nop 1")
            a(f"v_addc_co_u32 v{s.vWG+1}, vcc, 0, v{s.vWG+1}, vcc")
    def dma_advance(self):
        a=self.a; s=self
        a(f"s_add_u32 s{s.sXoff}, s{s.sXoff}, 128\ns_add_u32 s{s.sCn}, s{s.sCn}, 1")
    def gate_write_dyn(self, slot):
        a=self.a; s=self
        a(f"""
        s_cmp_eq_u32 s{s.sCn}, 8
        s_cselect_b64 vcc, -1, 0
        v_add_u32 v{s.vT0}, {slot}, v{s.vGD}
        v_cndmask_b32 v{s.vT1}, v{s.vGW}, v{s.vGA}, vcc
        s_and_b32 s{s.sT0}, s{s.sCn}, 7
        s_cmp_eq_u32 s{s.sW}, s{s.sT0}
        s_cselect_b64 exec, -1, 0
        ds_write_b16 v{s.vT0}, v{s.vT1}
        s_mov_b64 exec, -1
        """)
    def read_addrs(self):
        a=self.a; s=self
        vLane,vT0,vT1,vT2,vT3,vT4,vT5 = s.vLane,s.vT0,s.vT1,s.vT2,s.vT3,s.vT4,s.vT5
        E = s.vE
        a(f"""
        v_lshrrev_b32 v{vT0}, 4, v{vLane}
        v_and_b32 v{E}, 1, v{vT0}
        v_lshrrev_b32 v{vT0}, 1, v{vT0}
        v_and_b32 v{vT2}, 15, v{vLane}
        v_lshrrev_b32 v{E+1}, 2, v{vT2}
        v_and_b32 v{E+2}, 3, v{vT2}
        v_lshlrev_b32 v{vT0}, 3, v{vT0}
        v_add_u32 v{vT0}, v{vT0}, v{E+1}
        v_lshlrev_b32 v{E+3}, 9, v{vT0}
        s_and_b32 s{s.sT3}, s{s.sS1}, 63          ; delta1
        s_lshl_b32 s{s.sT4}, s{s.sN1}, 6          ; 64*n1 (delta2 = 0)
        s_lshl_b32 s{s.sT2}, s{s.sSplit}, 1
        s_sub_u32 s{s.sT4}, s{s.sT4}, s{s.sT2}    ; 64 n1 - 2*split
        """)
        def addr_from_cc(vcc_reg, dst):
            a(f"""
            v_lshlrev_b32 v{vT1}, 1, v{vcc_reg}
            v_add_u32 v{vT2}, s{s.sT3}, v{vT1}
            v_add_u32 v{vT1}, s{s.sT4}, v{vT1}
            v_cmp_gt_u32 vcc, s{s.sSplit}, v{vcc_reg}
            s_nop 1
            v_cndmask_b32 v{vT1}, v{vT1}, v{vT2}, vcc
            """)
            fin(vT1, dst)
        def fin(o, dst):
            a(f"""
            v_lshrrev_b32 v{vT2}, 6, v{o}
            v_xor_b32 v{vT2}, v{vT2}, v{E+1}
            v_lshlrev_b32 v{vT2}, 6, v{vT2}
            v_and_b32 v{vT3}, 63, v{o}
            v_add_u32 v{vT2}, v{vT2}, v{vT3}
            v_add_u32 v{dst}, v{vT2}, v{E+3}
            """)
        for tl in range(4):
            if tl < 2:
                a(f"""
                s_lshl_b32 s{s.sT0}, s{s.sCh}, 2
                s_add_u32 s{s.sT0}, s{s.sT0}, {tl}
                s_add_u32 s{s.sT1}, s{s.sT0}, 5
                s_cmp_ge_u32 s{s.sT1}, 6
                s_cselect_b32 s{s.sT2}, 6, 0
                s_sub_u32 s{s.sT1}, s{s.sT1}, s{s.sT2}
                s_mul_i32 s{s.sT0}, s{s.sT0}, 36
                s_mul_i32 s{s.sT1}, s{s.sT1}, 36
                s_add_u32 s{s.sT1}, s{s.sT1}, 20
                v_mov_b32 v{vT4}, s{s.sT0}
                v_mov_b32 v{vT5}, s{s.sT1}
                """)
            else:
                tau = tl
                a(f"v_mov_b32 v{vT4}, {36*tau}\nv_mov_b32 v{vT5}, {36*((tau+5)%6)+20}")
            a(f"""
            v_cmp_eq_u32 vcc, 0, v{E}
            v_lshlrev_b32 v{vT0}, 2, v{E+2}
            s_nop 0
            v_cndmask_b32 v{vT4}, v{vT5}, v{vT4}, vcc
            v_add_u32 v{vT4}, v{vT4}, v{vT0}
            """)
            addr_from_cc(vT4, s.vWR[tl])
            if tl == 2:
                a(f"""
                v_lshlrev_b32 v{vT4}, 2, v{E}
                v_add_u32 v{vT4}, v{vT4}, v{E+2}
                v_mul_u32_u24 v{vT5}, 36, v{vT4}
                v_add_u32 v{vT5}, 16, v{vT5}
                """)
                addr_from_cc(vT5, E+4)
                a(f"v_mov_b32 v{vT1}, 496")
                fin(vT1, E+5)
                a(f"""
                v_cmp_gt_u32 vcc, 6, v{vT4}
                s_nop 1
                v_cndmask_b32 v{E+4}, v{E+5}, v{E+4}, vcc
                s_cmp_eq_u32 s{s.sCh}, 0
                s_cselect_b64 vcc, -1, 0
                v_cndmask_b32 v{s.vWR[2]}, v{E+4}, v{s.vWR[2]}, vcc
                """)
        a(f"""
        v_lshrrev_b32 v{vT0}, 1, v{s.vTok}
        v_and_b32 v{vT0}, 7, v{vT0}
        v_xor_b32 v{vT0}, v{vT0}, v{s.vHf}
        v_lshlrev_b32 v{vT0}, 4, v{vT0}
        s_lshl_b32 s{s.sT0}, s{s.sRt}, 5
        v_add_u32 v{vT1}, s{s.sT0}, v{s.vTok}
        v_lshlrev_b32 v{vT1}, 7, v{vT1}
        v_add_u32 v{vT1}, 32768, v{vT1}
        v_add_u32 v{s.vXR[0]}, v{vT0}, v{vT1}
        v_xor_b32 v{s.vXR[1]}, 32, v{s.vXR[0]}
        v_xor_b32 v{s.vXR[2]}, 64, v{s.vXR[0]}
        v_xor_b32 v{s.vXR[3]}, 96, v{s.vXR[0]}
        """)
    def gemm(self, isv, ch, lbl):
        a=self.a; s=self
        ntile = 4 if ch==0 else 3
        nr = 1 + 2*ntile
        def reads(st, b):
            if "nods" in s.dbg: return
            a(f"ds_read_b128 {v(s.vXF[b],4)}, v{s.vXR[st]}")
            for tl in range(ntile):
                for u in range(2):
                    a(f"ds_read_b64_tr_b16 {v(s.vWF[b]+4*tl+2*u,2)}, v{s.vWR[tl]} offset:{(16*st+4*u)*512}")
        def mm(b):
            if "nomm" in s.dbg: return
            for tl in range(ntile):
                X, W = v(s.vXF[b],4), v(s.vWF[b]+4*tl,4)
                A,B = (X,W) if isv else (W,X)
                a(f"v_mfma_f32_32x32x16_bf16 {v(s.vD+16*tl,16)}, {A}, {B}, {v(s.vD+16*tl,16)}")
        a("s_waitcnt vmcnt(8) lgkmcnt(0)\ns_barrier")
        reads(0,0)
        a(f"s_mov_b32 s{s.sC}, 0")
        a(f"{lbl}_loop:")
        for j in range(3):
            pslot = ((j+2)%3)*SLOT
            for st in range(3):
                reads(st+1, (st+1)&1)
                if not (j == 0 and False):
                    its = (['w1','x1'],['w2'],['w3'])[st]
                    for it in its: s.dma(it, pslot)
                    if st == 2: s.dma_advance()
                a(f"s_waitcnt lgkmcnt({nr})")
                mm(st&1)
            a("s_waitcnt lgkmcnt(0)")
            if j == 2:
                a(f"s_cmp_eq_u32 s{s.sC}, 2\ns_cbranch_scc1 {lbl}_last")
            a("s_waitcnt vmcnt(6)\ns_barrier")
            d = SLOT if j < 2 else -2*SLOT
            for r in s.vWR[:ntile]+s.vXR: a(f"v_add_u32 v{r}, {d & 0xffffffff}, v{r}")
            reads(0, 0)
            if j == 2:
                a(f"""
                s_add_u32 s{s.sC}, s{s.sC}, 1
                """)
            if j == 0:
                a(f"""
                s_cmp_eq_u32 s{s.sC}, 2
                s_cselect_b32 s{s.sT0}, {576*3456}, 0
                v_subrev_co_u32 v{s.vWG}, vcc, s{s.sT0}, v{s.vWG}
                s_nop 1
                v_subbrev_co_u32 v{s.vWG+1}, vcc, 0, v{s.vWG+1}, vcc
                """)
            s.gate_write_dyn(j*SLOT)
            s.dma('x0', j*SLOT); s.dma('w0', j*SLOT)
            mm(1)
        a(f"s_branch {lbl}_loop")
        a(f"{lbl}_last:")
        mm(1)
        a("s_nop 15\ns_nop 3")
    def loader_setup_w(self, lbl):
        a=self.a; s=self
        vLane,vT0,vT1,vT2,vT3,vT4,vT5 = s.vLane,s.vT0,s.vT1,s.vT2,s.vT3,s.vT4,s.vT5
        a(f"""
        s_cmp_eq_u32 s{s.sMat1}, 0
        s_cselect_b32 s72, s{s.sWB}, s{s.sWA}
        s_cselect_b32 s73, s{s.sWB+1}, s{s.sWA+1}
        s_mov_b32 s74, {576*3456}
        s_mov_b32 s75, 0x00020000
        s_mov_b32 s{s.sT3}, 0
        s_mov_b32 s{s.sT4}, 0
        s_cmp_eq_u32 s{s.sN1}, 8
        s_cbranch_scc1 {lbl}_single
        s_sub_u32 s76, s{s.sWA}, s{s.sWB}
        s_subb_u32 s77, s{s.sWA+1}, s{s.sWB+1}
        s_cmp_lt_i32 s77, 0
        s_cbranch_scc1 {lbl}_neg
        s_cmp_lg_u32 s77, 0
        s_cbranch_scc1 {lbl}_far
        s_cmp_gt_u32 s76, 0xffc00000
        s_cbranch_scc1 {lbl}_far
        s_mov_b32 s{s.sT4}, s76
        s_add_u32 s74, s76, {576*3456}
        s_branch {lbl}_single
        {lbl}_neg:
        s_sub_u32 s76, s{s.sWB}, s{s.sWA}
        s_subb_u32 s77, s{s.sWB+1}, s{s.sWA+1}
        s_cmp_lg_u32 s77, 0
        s_cbranch_scc1 {lbl}_far
        s_cmp_gt_u32 s76, 0xffc00000
        s_cbranch_scc1 {lbl}_far
        s_mov_b32 s72, s{s.sWA}
        s_mov_b32 s73, s{s.sWA+1}
        s_mov_b32 s{s.sT3}, s76
        s_add_u32 s74, s76, {576*3456}
        {lbl}_single:
        s_lshl_b32 s{s.sT0}, s{s.sW}, 1
        v_add_u32 v{vT0}, s{s.sT0}, v{s.vHf}
        v_and_b32 v{vT1}, 3, v{vT0}
        v_lshrrev_b32 v{vT2}, 2, v{s.vTok}
        v_xor_b32 v{vT1}, v{vT2}, v{vT1}
        v_and_b32 v{vT2}, 3, v{s.vTok}
        v_lshlrev_b32 v{vT2}, 4, v{vT2}
        v_lshlrev_b32 v{vT3}, 6, v{vT1}
        v_add_u32 v{vT3}, v{vT3}, v{vT2}
        v_mov_b32 v{vT4}, 496
        v_cmp_ne_u32 s[{s.sMask}:{s.sMask+1}], v{vT3}, v{vT4}
        v_cmp_gt_u32 vcc, s{s.sN1}, v{vT1}            ; lb < n1
        s_andn2_b32 s{s.sT0}, s{s.sS1}, 63
        s_add_u32 s{s.sT0}, s{s.sT0}, s{s.sT3}
        s_lshl_b32 s{s.sT1}, s{s.sN1}, 6
        s_sub_u32 s{s.sT2}, s{s.sS2}, s{s.sT1}
        s_add_u32 s{s.sT2}, s{s.sT2}, s{s.sT4}
        v_add_u32 v{vT4}, s{s.sT0}, v{vT3}
        v_add_u32 v{vT5}, s{s.sT2}, v{vT3}
        v_cndmask_b32 v{vT4}, v{vT5}, v{vT4}, vcc
        v_mul_u32_u24 v{vT5}, 3456, v{vT0}
        v_add_u32 v{s.vWG}, v{vT4}, v{vT5}
        v_and_b32 v{vT0}, 3, v{vLane}
        v_xor_b32 v{vT0}, 7, v{vT0}
        v_lshlrev_b32 v{vT0}, 6, v{vT0}
        v_lshlrev_b32 v{vT1}, 9, v{vLane}
        v_add_u32 v{vT0}, v{vT0}, v{vT1}
        v_add_u32 v{s.vGD}, 48, v{vT0}
        """)
    def loader_chunk_buf(self, slot, c):
        a=self.a; s=self
        a(f"s_mov_b64 exec, s[{s.sMask}:{s.sMask+1}]")
        for k in range(16):
            a(f"s_add_u32 m0, s{s.sM}, {slot + k*2048}")
            a(f"s_mov_b32 s{s.sT0}, {(c*64 + 4*k)*3456}")
            a(f"buffer_load_dwordx4 v{s.vWG}, s[72:75], s{s.sT0} offen lds")
        a("s_mov_b64 exec, -1")
        for k in range(8):
            a(f"s_add_u32 m0, s{s.sM}, {slot + 32768 + k*2048}")
            a(f"s_mov_b32 s{s.sT0}, {c*128 + k*16*1152}")
            a(f"buffer_load_dwordx4 v{s.vXG}, s[8:11], s{s.sT0} offen lds")
    def loader_chunk(self, slot, c, mixed=False):
        a=self.a; s=self
        P = [s.vWG, 24]
        a(f"s_mov_b64 exec, s[{s.sMask}:{s.sMask+1}]")
        for k in range(16):
            a(f"s_add_u32 m0, s{s.sM}, {slot + k*2048}")
            if k == 0: a("s_nop 0")
            else: a(f"v_lshl_add_u64 {v(P[(k-1)&1],2)}, {v(P[(k-1)&1],2)}, 0, s[72:73]")
            a(f"global_load_lds_dwordx4 {v(P[k&1],2)}, off")
        a(f"v_lshl_add_u64 {v(P[1],2)}, {v(P[1],2)}, 0, s[72:73]")
        a("s_mov_b64 exec, -1")
        for k in range(8):
            a(f"s_add_u32 m0, s{s.sM}, {slot + 32768 + k*2048}")
            a(f"s_mov_b32 s{s.sT0}, {c*128 + k*16*1152}")
            a(f"buffer_load_dwordx4 v{s.vXG}, s[8:11], s{s.sT0} offen lds")
    def loader_gate(self, slot, c):
        a=self.a; s=self
        a(f"v_add_u32 v{s.vT0}, {slot}, v{s.vGD}")
        a(f"ds_write_b16 v{s.vT0}, v{s.vD+c}")
    def loader(self, lbl):
        a=self.a; s=self
        n = 24
        for far in (False, True):
            if far:
                a(f"{lbl}_far:")
                s.setup_w()
                a(f"s_mov_b32 s72, {4*3456}\ns_mov_b32 s73, 0")
                a(f"v_lshl_add_u64 v[24:25], {v(s.vWG,2)}, 0, s[72:73]")
                a(f"s_mov_b32 s72, {8*3456}")
            else:
                s.loader_setup_w(lbl)
            chunk = s.loader_chunk if far else s.loader_chunk_buf
            a(f"v_lshlrev_b32 v{s.vT0}, 1, v{s.vLane}")
            for c in range(9): a(f"buffer_load_ushort v{s.vD+c}, v{s.vT0}, s[4:7], 0 offen offset:{128*c}")
            chunk(0, 0)
            chunk(SLOT, 1)
            a(f"s_waitcnt vmcnt({n})")
            for c in range(3): s.loader_gate(c*SLOT, c)
            a("s_waitcnt lgkmcnt(0)\ns_barrier")
            chunk(2*SLOT, 2)
            for G in range(8):
                nout = n if G+2 <= 8 else 0
                a(f"s_waitcnt vmcnt({nout}) lgkmcnt(0)\ns_barrier")
                if G+3 <= 8:
                    s.loader_gate((G%3)*SLOT, G+3)
                    chunk((G%3)*SLOT, G+3)
            a("s_endpgm")
    def gemm2(self, isv, ch, lbl):
        a=self.a; s=self
        ntile = 4 if ch==0 else 3
        nr = 1 + 2*ntile
        def reads(st, b):
            if "nods" in s.dbg: return
            a(f"ds_read_b128 {v(s.vXF[b],4)}, v{s.vXR[st]}")
            for tl in range(ntile):
                for u in range(2):
                    a(f"ds_read_b64_tr_b16 {v(s.vWF[b]+4*tl+2*u,2)}, v{s.vWR[tl]} offset:{(16*st+4*u)*512}")
        def mm(b):
            if "nomm" in s.dbg: return
            for tl in range(ntile):
                X, W = v(s.vXF[b],4), v(s.vWF[b]+4*tl,4)
                A,B = (X,W) if isv else (W,X)
                a(f"v_mfma_f32_32x32x16_bf16 {v(s.vD+16*tl,16)}, {A}, {B}, {v(s.vD+16*tl,16)}")
        a("s_barrier")
        reads(0,0)
        a(f"s_mov_b32 s{s.sC}, 0")
        a(f"{lbl}_loop:")
        for j in range(3):
            for st in range(3):
                reads(st+1, (st+1)&1)
                a(f"s_waitcnt lgkmcnt({nr})")
                mm(st&1)
            a("s_waitcnt lgkmcnt(0)")
            if j == 2:
                a(f"s_cmp_eq_u32 s{s.sC}, 2\ns_cbranch_scc1 {lbl}_last")
            a("s_barrier")
            d = SLOT if j < 2 else -2*SLOT
            for r in s.vWR[:ntile]+s.vXR: a(f"v_add_u32 v{r}, {d & 0xffffffff}, v{r}")
            reads(0, 0)
            if j == 2: a(f"s_add_u32 s{s.sC}, s{s.sC}, 1")
            mm(1)
        a(f"s_branch {lbl}_loop")
        a(f"{lbl}_last:")
        mm(1)
        a("s_nop 15\ns_nop 3")
    def phi_regs(self, regs, tmp):
        a=self.a
        for i,r in enumerate(regs): a(f"v_min_f32 v{tmp+i}, 0, v{r}")
        for i,r in enumerate(regs): a(f"v_mul_f32 v{tmp+i}, {LOG2E}, v{tmp+i}")
        for i,r in enumerate(regs): a(f"v_exp_f32 v{tmp+i}, v{tmp+i}")
        for i,r in enumerate(regs): a(f"v_max_f32 v{r}, 0, v{r}")
        for i,r in enumerate(regs): a(f"v_add_f32 v{r}, v{r}, v{tmp+i}")
        for i,r in enumerate(regs): a(f"v_add_f32 v{r}, {EPS}, v{r}")
    def list_kind(self, sl):
        a=self.a; s=self
        a(f"""
        s_mul_i32 s{s.sT0}, s{s.sJ8}, 12
        s_add_u32 s{s.sT0}, s{s.sT0}, {sl}
        s_lshr_b32 s{s.sKind}, s{s.sT0}, 5
        s_and_b32 s{s.sHead}, s{s.sT0}, 31
        """)
    def q_slice(self, b, sl, lbl):
        a=self.a; s=self; E=s.vE
        L = a.uid(lbl+"_s")
        s.list_kind(sl)
        a(f"""
        s_cmp_eq_u32 s{s.sKind}, 1
        s_cbranch_scc1 {L}_k
        s_cmp_eq_u32 s{s.sKind}, 2
        s_cbranch_scc1 {L}_phi
        """)
        for i in range(8): a(f"v_mul_f32 v{b+i}, {QSC}, v{b+i}")
        a(f"s_mov_b32 s{s.sBase}, {OFF_QBM}\ns_branch {L}_q\n{L}_phi:")
        s.phi_regs([b+i for i in range(8)], E)
        a(f"""
        s_mov_b32 s{s.sBase}, {OFF_PQM}
        {L}_q:
        s_lshl_b32 s{s.sT0}, s{s.sHead}, 6
        s_add_u32 s{s.sT0}, s{s.sT0}, s{s.sT32}
        s_lshl_b32 s{s.sT0}, s{s.sT0}, 10
        s_add_u32 s{s.sBase}, s{s.sBase}, s{s.sT0}
        s_branch {L}_st
        {L}_k:
        v_mul_f32 v{E}, v{b}, v{b}
        """)
        for i in range(1,8): a(f"v_fmac_f32 v{E}, v{b+i}, v{b+i}")
        a(f"v_mov_b32 v{E+2}, v{E}\ns_nop 1\nv_permlane32_swap_b32 v{E}, v{E+2}\ns_nop 1\nv_add_f32 v{E}, v{E}, v{E+2}\ns_nop 1")
        for k in (1,2,4,8):
            a(f"v_max_f32_dpp v{E}, v{E}, v{E} row_ror:{k} row_mask:0xf bank_mask:0xf\ns_nop 1")
        a(f"""
        v_readlane_b32 s{s.sT0}, v{E}, 0
        v_readlane_b32 s{s.sT1}, v{E}, 16
        s_nop 3
        s_max_u32 s{s.sT0}, s{s.sT0}, s{s.sT1}
        v_mov_b32 v{E}, s{s.sT0}
        s_lshl_b32 s{s.sT0}, s{s.sHead}, 6
        s_add_u32 s{s.sT0}, s{s.sT0}, s{s.sT32}
        s_lshl_b32 s{s.sT0}, s{s.sT0}, 3
        s_add_u32 s{s.sT0}, s{s.sT0}, {OFF_KM}
        """)
        s.st(f"buffer_store_dword v{E}, v{s.vT5}, s[12:15], s{s.sT0} offen")
        a(f"""
        s_mul_i32 s{s.sBase}, s{s.sHead}, {HS_KVB}
        s_lshr_b32 s{s.sT0}, s{s.sT32}, 3
        s_mul_i32 s{s.sT0}, s{s.sT0}, {CH}
        s_add_u32 s{s.sBase}, s{s.sBase}, s{s.sT0}
        s_and_b32 s{s.sT0}, s{s.sT32}, 7
        s_lshl_b32 s{s.sT0}, s{s.sT0}, 10
        s_add_u32 s{s.sBase}, s{s.sBase}, s{s.sT0}
        s_add_u32 s{s.sBase}, s{s.sBase}, {OFF_KVB}
        {L}_st:
        """)
        for i in range(4): a(f"v_cvt_pk_bf16_f32 v{b+i}, v{b+2*i}, v{b+2*i+1}")
        s.st(f"buffer_store_dwordx4 {v(b,4)}, v{s.vL16}, s[12:15], s{s.sBase} offen")
    def q_epilogue(self, lbl, ch):
        a=self.a; s=self; E=s.vE; vD=s.vD
        ntile = 4 if ch==0 else 2
        a(f"v_cmp_eq_u32 vcc, 0, v{s.vLane}\nv_mov_b32 v{s.vT5}, {BIG}\ns_nop 0\nv_cndmask_b32 v{s.vT5}, v{s.vT5}, 0, vcc")
        for tl in range(ntile):
            tau = ch*4+tl
            s.q_slice(vD+16*tl, 2*tau, lbl)
            s.q_slice(vD+16*tl+8, 2*((tau+5)%6)+1, lbl)
        if ch == 1:
            b0 = vD+32
            L = a.uid(lbl+"_g")
            a(f"""
            s_cmp_lg_u32 s{s.sJt}, 0
            s_cbranch_scc1 {L}
            v_mul_f32 v{E}, 0xbfb8aa3b, v{b0+12}
            v_exp_f32 v{E}, v{E}
            v_cmp_gt_u32 vcc, 32, v{s.vLane}
            v_mov_b32 v{E+1}, {BIG}
            v_add_f32 v{E}, 1.0, v{E}
            v_rcp_f32 v{E}, v{E}
            v_cndmask_b32 v{E+1}, v{E+1}, v{s.vL4}, vcc
            s_lshl_b32 s{s.sT0}, s{s.sT32}, 7
            s_add_u32 s{s.sT0}, s{s.sT0}, {OFF_G}
            """)
            s.st(f"buffer_store_dword v{E}, v{E+1}, s[12:15], s{s.sT0} offen")
            a(f"{L}:")
            for aa in range(3):
                L = a.uid(lbl+"_r")
                b = b0+4*aa
                s.list_kind(4*aa)
                a(f"""
                s_cmp_eq_u32 s{s.sKind}, 1
                s_cbranch_scc1 {L}_k
                s_cmp_eq_u32 s{s.sKind}, 2
                s_cbranch_scc1 {L}_phi
                """)
                for i in range(4): a(f"v_mul_f32 v{b+i}, {QSC}, v{b+i}")
                a(f"s_mov_b32 s{s.sBase}, {OFF_QBR}\ns_branch {L}_q\n{L}_phi:")
                s.phi_regs([b+i for i in range(4)], E)
                a(f"""
                s_mov_b32 s{s.sBase}, {OFF_PQR}
                {L}_q:
                s_lshl_b32 s{s.sT0}, s{s.sHead}, 6
                s_add_u32 s{s.sT0}, s{s.sT0}, s{s.sT32}
                s_lshl_b32 s{s.sT0}, s{s.sT0}, 7
                s_add_u32 s{s.sBase}, s{s.sBase}, s{s.sT0}
                s_mov_b32 s{s.sT4}, 8192
                v_lshlrev_b32 v{s.vT1}, 14, v{s.vHf}
                v_add_u32 v{s.vT0}, v{s.vL4}, v{s.vT1}
                s_branch {L}_st
                {L}_k:
                v_mul_f32 v{E}, v{b}, v{b}
                v_mul_f32 v{E+1}, v{b+2}, v{b+2}
                v_fmac_f32 v{E}, v{b+1}, v{b+1}
                v_fmac_f32 v{E+1}, v{b+3}, v{b+3}
                s_nop 1
                """)
                for k in (1,2,4,8):
                    a(f"v_max_f32_dpp v{E}, v{E}, v{E} row_ror:{k} row_mask:0xf bank_mask:0xf")
                    a(f"v_max_f32_dpp v{E+1}, v{E+1}, v{E+1} row_ror:{k} row_mask:0xf bank_mask:0xf\ns_nop 0")
                a(f"""
                s_lshl_b32 s{s.sT4}, s{s.sHead}, 6
                s_add_u32 s{s.sT4}, s{s.sT4}, s{s.sT32}
                s_lshl_b32 s{s.sT4}, s{s.sT4}, 3
                s_add_u32 s{s.sT4}, s{s.sT4}, {OFF_KM+4}
                """)
                for (rg, l0, l1, dh) in ((E,0,16,0),(E+1,0,16,1),(E,32,48,2),(E+1,32,48,3)):
                    a(f"""
                    v_readlane_b32 s{s.sT0}, v{rg}, {l0}
                    v_readlane_b32 s{s.sT1}, v{rg}, {l1}
                    s_nop 3
                    s_max_u32 s{s.sT0}, s{s.sT0}, s{s.sT1}
                    v_mov_b32 v{E+2+dh}, s{s.sT0}
                    s_add_u32 s{s.sT1}, s{s.sT4}, {dh*512}
                    """)
                    s.st(f"buffer_store_dword v{E+2+dh}, v{s.vT5}, s[12:15], s{s.sT1} offen")
                a(f"""
                s_mul_i32 s{s.sBase}, s{s.sHead}, {HS_KVB}
                s_lshr_b32 s{s.sT0}, s{s.sT32}, 3
                s_mul_i32 s{s.sT0}, s{s.sT0}, {CH}
                s_add_u32 s{s.sBase}, s{s.sBase}, s{s.sT0}
                s_and_b32 s{s.sT0}, s{s.sT32}, 7
                s_lshl_b32 s{s.sT0}, s{s.sT0}, 7
                s_add_u32 s{s.sBase}, s{s.sBase}, s{s.sT0}
                s_add_u32 s{s.sBase}, s{s.sBase}, {OFF_KVB+8192}
                s_mov_b32 s{s.sT4}, {HS_KVB}
                v_mul_u32_u24 v{s.vT1}, {2*HS_KVB}, v{s.vHf}
                v_add_u32 v{s.vT0}, v{s.vL4}, v{s.vT1}
                {L}_st:
                v_cvt_pk_bf16_f32 v{b}, v{b}, v{b+1}
                v_cvt_pk_bf16_f32 v{b+1}, v{b+2}, v{b+3}
                s_add_u32 s{s.sT4}, s{s.sT4}, s{s.sBase}
                """)
                s.st(f"buffer_store_dword v{b}, v{s.vT0}, s[12:15], s{s.sBase} offen")
                s.st(f"buffer_store_dword v{b+1}, v{s.vT0}, s[12:15], s{s.sT4} offen")
    def lane_off(self, vL, vOut, vKindOut):
        a=self.a; s=self
        a(f"""
        v_lshrrev_b32 v{vKindOut}, 5, v{vL}
        v_and_b32 v{s.vT3}, 31, v{vL}
        s_lshr_b32 s{s.sT0}, s{s.sT32}, 3
        s_mul_i32 s{s.sT0}, s{s.sT0}, {CH}
        s_and_b32 s{s.sT1}, s{s.sT32}, 7
        s_mul_i32 s{s.sT1}, s{s.sT1}, 1280
        s_add_u32 s{s.sT0}, s{s.sT0}, s{s.sT1}
        s_add_u32 s{s.sT0}, s{s.sT0}, {OFF_KVB+9216}
        s_mov_b32 s{s.sT1}, {HS_KVB}
        v_mul_lo_u32 v{vOut}, v{s.vT3}, s{s.sT1}
        v_add_u32 v{vOut}, s{s.sT0}, v{vOut}
        s_mul_i32 s{s.sT0}, s{s.sT32}, 1280
        v_mul_u32_u24 v{s.vT3}, {HS_V}, v{s.vT3}
        v_add_u32 v{s.vT3}, s{s.sT0}, v{s.vT3}
        v_add_u32 v{s.vT4}, {OFF_VA}, v{s.vT3}
        v_add_u32 v{s.vT3}, {OFF_PK}, v{s.vT3}
        v_cmp_eq_u32 vcc, 1, v{vKindOut}
        s_nop 1
        v_cndmask_b32 v{vOut}, v{vOut}, v{s.vT3}, vcc
        v_cmp_eq_u32 vcc, 2, v{vKindOut}
        s_nop 1
        v_cndmask_b32 v{vOut}, v{vOut}, v{s.vT4}, vcc
        v_mul_u32_u24 v{s.vT3}, 320, v{s.vHf}
        v_add_u32 v{vOut}, v{vOut}, v{s.vT3}
        """)
    def v_tile(self, b, lbl):
        a=self.a; s=self; E=s.vE
        L = a.uid(lbl+"_v")
        a(f"v_cmp_eq_u32 vcc, 1, v{s.vT2}\ns_nop 3\ns_cmp_eq_u64 vcc, 0\ns_cbranch_scc1 {L}")
        for half in range(2):
            regs = [b+8*half+i for i in range(8)]
            for i,r in enumerate(regs): a(f"v_mov_b32 v{E+8+i}, v{r}")
            s.phi_regs([E+8+i for i in range(8)], E)
            for i,r in enumerate(regs): a(f"v_cndmask_b32 v{r}, v{r}, v{E+8+i}, vcc")
        a(f"{L}:")
        for hs in range(2):
            for i in range(4): a(f"v_cvt_pk_bf16_f32 v{b+8*hs+i}, v{b+8*hs+2*i}, v{b+8*hs+2*i+1}")
        s.st(f"buffer_store_dwordx4 {v(b,4)}, v{s.vT1}, s[12:15], 0 offen")
        s.st(f"buffer_store_dwordx4 {v(b+8,4)}, v{s.vT1}, s[12:15], 0 offen offset:640")
    def v_epilogue(self, lbl, ch):
        a=self.a; s=self; E=s.vE; vD=s.vD
        ntile = 4 if ch==0 else 2
        for tl in range(ntile):
            tau = ch*4+tl
            a(f"""
            s_mul_i32 s{s.sT2}, s{s.sJ8}, 12
            s_add_u32 s{s.sT3}, s{s.sT2}, {2*tau}
            s_add_u32 s{s.sT2}, s{s.sT2}, {2*((tau+5)%6)+1}
            v_cmp_gt_u32 vcc, 16, v{s.vTok}
            v_mov_b32 v{s.vT0}, s{s.sT2}
            v_mov_b32 v{s.vT1}, s{s.sT3}
            v_cndmask_b32 v{s.vT0}, v{s.vT0}, v{s.vT1}, vcc
            """)
            s.lane_off(s.vT0, s.vT1, s.vT2)
            a(f"""
            v_and_b32 v{s.vT3}, 15, v{s.vTok}
            v_lshlrev_b32 v{s.vT3}, 4, v{s.vT3}
            v_add_u32 v{s.vT1}, v{s.vT1}, v{s.vT3}
            """)
            s.v_tile(vD+16*tl, lbl)
        if ch == 1:
            b0 = vD+32
            a(f"""
            s_mul_i32 s{s.sT2}, s{s.sJ8}, 12
            v_lshrrev_b32 v{s.vT0}, 2, v{s.vTok}
            v_lshlrev_b32 v{s.vT0}, 1, v{s.vT0}
            v_bfe_u32 v{s.vT1}, v{s.vTok}, 1, 1
            v_add_u32 v{s.vT0}, v{s.vT0}, v{s.vT1}
            v_add_u32 v{s.vT0}, s{s.sT2}, v{s.vT0}
            """)
            s.lane_off(s.vT0, s.vT1, s.vT2)
            a(f"""
            v_and_b32 v{s.vT3}, 1, v{s.vTok}
            v_lshlrev_b32 v{s.vT3}, 4, v{s.vT3}
            v_add_u32 v{s.vT3}, 256, v{s.vT3}
            v_add_u32 v{s.vT1}, v{s.vT1}, v{s.vT3}
            v_cmp_gt_u32 vcc, 24, v{s.vTok}
            v_mov_b32 v{s.vT3}, {BIG}
            s_nop 0
            v_cndmask_b32 v{s.vT1}, v{s.vT3}, v{s.vT1}, vcc
            """)
            s.v_tile(b0, lbl)
            a(f"""
            s_mul_i32 s{s.sT2}, s{s.sJ8}, 12
            v_add_u32 v{s.vT0}, s{s.sT2}, v{s.vTok}
            """)
            s.lane_off(s.vT0, s.vT1, s.vT2)
            a(f"""
            v_add_u32 v{s.vT1}, {18*16}, v{s.vT1}
            v_cmp_gt_u32 vcc, 12, v{s.vTok}
            v_cmp_ne_u32 s[{s.sT0}:{s.sT0+1}], 1, v{s.vT2}
            v_mov_b32 v{s.vT3}, {BIG}
            s_nop 1
            s_and_b64 vcc, vcc, s[{s.sT0}:{s.sT0+1}]
            v_cndmask_b32 v{s.vT1}, v{s.vT3}, v{s.vT1}, vcc
            v_mov_b32 v{E}, 0x3f803f80
            v_mov_b32 v{E+1}, 0x3f803f80
            v_mov_b32 v{E+2}, 0x3f803f80
            v_mov_b32 v{E+3}, 0x3f803f80
            """)
            s.st(f"buffer_store_dwordx4 {v(E,4)}, v{s.vT1}, s[12:15], 0 offen")
            s.st(f"buffer_store_dwordx4 {v(E,4)}, v{s.vT1}, s[12:15], 0 offen offset:640")
def gen_k1d(name="k1_kernel", stamps=False, sc="", dbg=""):
    a = Asm()
    p = QKV(a, name, sc); p.dbg = dbg
    def stamp(i):
        if stamps: a(f"s_memtime s[{50+2*i}:{51+2*i}]")
    a(f"""
    s_cmp_ge_u32 s2, 256
    s_cbranch_scc1 {name}_end
    s_load_dwordx2 s[8:9], s[0:1], 0
    s_load_dwordx2 s[16:17], s[0:1], 8
    s_load_dwordx2 s[18:19], s[0:1], 32
    s_load_dwordx2 s[4:5], s[0:1], 48
    s_load_dwordx2 s[12:13], s[0:1], 72
    s_memtime s[50:51]
    s_memrealtime s[66:67]
    s_mov_b32 s10, {S*D*2}
    s_mov_b32 s11, 0x00020000
    s_mov_b32 s14, {WS_END}
    s_mov_b32 s15, 0x00020000
    s_mov_b32 s6, 1152
    s_mov_b32 s7, 0x00020000
    """)
    p.setup()
    a(f"""
    s_mov_b32 s{p.sSlot}, 0
    s_mov_b32 s{p.sSlotM}, s{p.sM}
    s_mov_b32 s{p.sXoff}, 0
    s_mov_b32 s{p.sCn}, 0
    s_mov_b32 s{p.sDm}, 0
    s_waitcnt lgkmcnt(0)
    """)
    p.dma('x0',0,True); p.dma('x1',0,True)
    a(f"""
    s_lshl_b32 s{p.sT0}, s{p.sW}, 7
    v_lshlrev_b32 v{p.vT0}, 1, v{p.vLane}
    buffer_load_ushort v{p.vGW}, v{p.vT0}, s[4:7], s{p.sT0} offen
    buffer_load_ushort v{p.vGA}, v{p.vT0}, s[4:7], 0 offen offset:1024
    """)
    p.setup_w()
    for it in ('w0','w1','w2','w3'): p.dma(it,0,True)
    p.dma_advance()
    for it in ('x0','w0','w1','x1','w2','w3'): p.dma(it,SLOT,True)
    p.dma_advance()
    p.dma('x0',2*SLOT,True); p.dma('w0',2*SLOT,True)
    p.read_addrs()
    for i in range(64): a(f"v_mov_b32 v{p.vD+i}, 0")
    a("s_waitcnt vmcnt(12)")
    for c in range(3):
        L = a.uid("gw")
        a(f"s_cmp_eq_u32 s{p.sW}, {c}\ns_cbranch_scc0 {L}\nv_add_u32 v{p.vT0}, {c*SLOT}, v{p.vGD}\nds_write_b16 v{p.vT0}, v{p.vGW}\n{L}:")
    a(f"""
    s_lshl_b32 s{p.sT0}, s{p.sIsV}, 1
    s_add_u32 s{p.sT0}, s{p.sT0}, s{p.sCh}
    s_cmp_eq_u32 s{p.sT0}, 1
    s_cbranch_scc1 {name}_v01
    s_cmp_eq_u32 s{p.sT0}, 2
    s_cbranch_scc1 {name}_v10
    s_cmp_eq_u32 s{p.sT0}, 3
    s_cbranch_scc1 {name}_v11
    """)
    for (isv,ch) in ((0,0),(0,1),(1,0),(1,1)):
        if (isv,ch) != (0,0): a(f"{name}_v{isv}{ch}:")
        stamp(1)
        p.gemm(isv, ch, f"{name}_g{isv}{ch}")
        stamp(2)
        (p.v_epilogue if isv else p.q_epilogue)(f"{name}_e{isv}{ch}", ch)
        stamp(3); stamp(4)
        if stamps:
            a("s_waitcnt vmcnt(0)")
            stamp(5)
            a("s_memrealtime s[68:69]\ns_waitcnt lgkmcnt(0)")
            a("s_lshl_b32 s28, s2, 3\ns_add_u32 s28, s28, s24\ns_lshl_b32 s28, s28, 5\ns_add_u32 s28, s28, 0x2000000\ns_mov_b32 s14, 0x4000000")
            for i in range(1,6): a(f"s_sub_u32 s{50+2*i}, s{50+2*i}, s50")
            a("v_mov_b32 v2, s66\nv_mov_b32 v3, s52\nv_mov_b32 v4, s54\nv_mov_b32 v5, s56\nv_mov_b32 v6, s58\nv_mov_b32 v7, s68\nv_mov_b32 v8, s60\nv_mov_b32 v9, 0\nv_mov_b32 v10, 0")
            a("buffer_store_dwordx4 v[2:5], v10, s[12:15], s28 offen\nbuffer_store_dwordx4 v[6:9], v10, s[12:15], s28 offen offset:16")
        a("s_endpgm")
    a(f"{name}_end:\ns_endpgm")
    return kernel_head(name) + a.text() + kernel_desc(name, p.NV)
def gen_k1e(name="k1_kernel", stamps=False, sc="", dbg=""):
    a = Asm()
    p = QKV(a, name, sc); p.dbg = dbg
    def stamp(i):
        if stamps: a(f"s_memtime s[{50+2*i}:{51+2*i}]")
    a(f"""
    s_cmp_ge_u32 s2, 256
    s_cbranch_scc1 {name}_end
    s_load_dwordx2 s[8:9], s[0:1], 0
    s_load_dwordx2 s[16:17], s[0:1], 8
    s_load_dwordx2 s[18:19], s[0:1], 32
    s_load_dwordx2 s[4:5], s[0:1], 48
    s_load_dwordx2 s[12:13], s[0:1], 72
    s_memtime s[50:51]
    s_memrealtime s[66:67]
    s_mov_b32 s10, {S*D*2}
    s_mov_b32 s11, 0x00020000
    s_mov_b32 s14, {WS_END}
    s_mov_b32 s15, 0x00020000
    s_mov_b32 s6, 1152
    s_mov_b32 s7, 0x00020000
    """)
    p.setup()
    a(f"s_cmp_lt_u32 s{p.sW}, 8\ns_cbranch_scc1 {name}_comp")
    a(f"s_sub_u32 s{p.sW}, s{p.sW}, 8")
    a(f"""
    v_lshrrev_b32 v{p.vT0}, 3, v{p.vLane}
    s_lshl_b32 s{p.sT0}, s{p.sW}, 3
    v_add_u32 v{p.vT0}, s{p.sT0}, v{p.vT0}
    v_lshrrev_b32 v{p.vT1}, 1, v{p.vT0}
    v_and_b32 v{p.vT1}, 7, v{p.vT1}
    v_and_b32 v{p.vT2}, 7, v{p.vLane}
    v_xor_b32 v{p.vT1}, v{p.vT1}, v{p.vT2}
    v_lshlrev_b32 v{p.vT1}, 4, v{p.vT1}
    s_lshl_b32 s{p.sT0}, s{p.sR}, 7
    v_add_u32 v{p.vT0}, s{p.sT0}, v{p.vT0}
    v_mul_u32_u24 v{p.vT0}, 1152, v{p.vT0}
    v_add_u32 v{p.vXG}, v{p.vT0}, v{p.vT1}
    s_lshl_b32 s{p.sM}, s{p.sW}, 10
    s_mov_b32 s{p.sXoff}, 0
    s_waitcnt lgkmcnt(0)
    """)
    p.loader(name+"_ld")
    a(f"{name}_comp:\ns_waitcnt lgkmcnt(0)")
    p.read_addrs()
    for i in range(64): a(f"v_mov_b32 v{p.vD+i}, 0")
    a(f"""
    s_lshl_b32 s{p.sT0}, s{p.sIsV}, 1
    s_add_u32 s{p.sT0}, s{p.sT0}, s{p.sCh}
    s_cmp_eq_u32 s{p.sT0}, 1
    s_cbranch_scc1 {name}_v01
    s_cmp_eq_u32 s{p.sT0}, 2
    s_cbranch_scc1 {name}_v10
    s_cmp_eq_u32 s{p.sT0}, 3
    s_cbranch_scc1 {name}_v11
    """)
    for (isv,ch) in ((0,0),(0,1),(1,0),(1,1)):
        if (isv,ch) != (0,0): a(f"{name}_v{isv}{ch}:")
        stamp(1)
        p.gemm2(isv, ch, f"{name}_g{isv}{ch}")
        stamp(2)
        (p.v_epilogue if isv else p.q_epilogue)(f"{name}_e{isv}{ch}", ch)
        stamp(3); stamp(4)
        if stamps:
            a("s_waitcnt vmcnt(0)")
            stamp(5)
            a("s_memrealtime s[68:69]\ns_waitcnt lgkmcnt(0)")
            a("s_lshl_b32 s28, s2, 3\ns_add_u32 s28, s28, s24\ns_lshl_b32 s28, s28, 5\ns_add_u32 s28, s28, 0x2000000\ns_mov_b32 s14, 0x4000000")
            for i in range(1,6): a(f"s_sub_u32 s{50+2*i}, s{50+2*i}, s50")
            a("v_mov_b32 v2, s66\nv_mov_b32 v3, s52\nv_mov_b32 v4, s54\nv_mov_b32 v5, s56\nv_mov_b32 v6, s58\nv_mov_b32 v7, s68\nv_mov_b32 v8, s60\nv_mov_b32 v9, 0\nv_mov_b32 v10, 0")
            a("buffer_store_dwordx4 v[2:5], v10, s[12:15], s28 offen\nbuffer_store_dwordx4 v[6:9], v10, s[12:15], s28 offen offset:16")
        a("s_endpgm")
    a(f"{name}_end:\ns_endpgm")
    return kernel_head(name) + a.text() + kernel_desc(name, p.NV)
```

```python
from asmlib import *
from model import *
LDS_K2 = 163840
def gen_k2(name="k2_kernel", stamps=False):
    a = Asm()
    nst=[0]
    def stamp():
        if stamps:
            a(f"s_memtime s[{40+2*nst[0]}:{41+2*nst[0]}]"); nst[0]+=1
    vLane, vT0, vT1, vT2, vT3 = 1, 2, 3, 4, 5
    vAK, vAR, vAV = 6, 7, 8
    vOffQ, vOffR, vOffKV, vL4 = 9, 10, 11, 19
    vQ1 = [12, 20]
    vQ2 = [24, 28]
    vPQ1, vPQ2 = 32, 16
    vK1 = [36, 40]; vKR = [44, 46]
    vV = [52, 60]
    vP = 68
    vM = [76, 77]
    vS = [80, 96]; vO = [112, 128]; vNM = [144, 160]; vKV = 176
    vPK = [192, 200]
    NV = 208
    sHead, sQb, sW, sQt, sT0, sT1, sT2, sT3 = 12, 13, 14, 15, 16, 17, 18, 19
    sKVB, sM0, sKV, sFlag = 20, 21, 22, 23
    sQM, sQR, sHalf, sP = 24, 25, 26, 27
    sOM, sOR = 28, 29
    sF0, sF1 = 30, 31
    a(f"""
    s_cmp_ge_u32 s2, 256
    s_cbranch_scc1 {name}_end
    s_load_dwordx2 s[4:5], s[0:1], 72
    s_memtime s[40:41]
    s_memrealtime s[60:61]
    s_and_b32 s{sHead}, s2, 7
    s_lshl_b32 s{sHead}, s{sHead}, 2
    s_lshr_b32 s{sT0}, s2, 3
    s_and_b32 s{sT1}, s{sT0}, 3
    s_add_u32 s{sHead}, s{sHead}, s{sT1}
    s_lshr_b32 s{sQb}, s2, 5
    v_lshrrev_b32 v{vT0}, 6, v0
    v_and_b32 v{vLane}, 63, v0
    v_readfirstlane_b32 s{sW}, v{vT0}
    v_lshlrev_b32 v{vOffQ}, 4, v{vLane}
    v_and_b32 v{vT1}, 31, v{vLane}
    v_lshrrev_b32 v{vT2}, 5, v{vLane}
    v_lshlrev_b32 v{vL4}, 2, v{vT1}
    s_and_b32 s{sP}, s{sW}, 3
    s_lshr_b32 s{sHalf}, s{sW}, 2
    s_lshl_b32 s{sQt}, s{sQb}, 3
    s_lshl_b32 s{sT0}, s{sP}, 1
    s_add_u32 s{sQt}, s{sQt}, s{sT0}
    s_lshl_b32 s{sT0}, s{sHead}, 6
    s_add_u32 s{sT0}, s{sT0}, s{sQt}
    s_lshl_b32 s{sQM}, s{sT0}, 10
    s_lshl_b32 s{sQR}, s{sT0}, 7
    s_lshl_b32 s{sT1}, s{sHalf}, 10
    s_add_u32 s{sOM}, s{sQM}, s{sT1}
    s_lshl_b32 s{sT1}, s{sHalf}, 7
    s_add_u32 s{sOR}, s{sQR}, s{sT1}
    s_waitcnt lgkmcnt(0)
    s_mov_b32 s8, s4
    s_mov_b32 s9, s5
    s_mov_b32 s10, {WS_END}
    s_mov_b32 s11, 0x00020000
    s_add_u32 s{sT0}, s{sQM}, {OFF_QBM}
    s_add_u32 s{sT1}, s{sQR}, {OFF_QBR}
    s_lshl_b32 s{sT2}, s{sHead}, 9
    s_add_u32 s{sT2}, s{sT2}, {OFF_KM}
    v_lshlrev_b32 v{vT3}, 3, v{vLane}
    """)
    a.vmem(f"buffer_load_dwordx4 {v(vQ1[0],4)}, v{vOffQ}, s[8:11], s{sT0} offen", "q")
    a.vmem(f"buffer_load_dwordx4 {v(vQ1[1],4)}, v{vOffQ}, s[8:11], s{sT0} offen offset:1024", "q")
    a.vmem(f"buffer_load_dword v{vQ2[0]}, v{vL4}, s[8:11], s{sT1} offen", "q")
    a.vmem(f"buffer_load_dword v{vQ2[1]}, v{vL4}, s[8:11], s{sT1} offen offset:128", "q")
    a.vmem(f"buffer_load_dwordx2 {v(vM[0],2)}, v{vT3}, s[8:11], s{sT2} offen", "q")
    a(f"""
    s_mul_i32 s{sKVB}, s{sHead}, {8*CH}
    s_add_u32 s{sKVB}, s{sKVB}, {OFF_KVB}
    """)
    ndma = [0]
    def dma_to(n, track=True):
        while ndma[0] < n:
            i = ndma[0]
            k0 = (8*i)//19; k1 = (8*i+7)//19
            c0 = (k0//2 + 4*(k0%2) - k0);
            a(f"s_lshl_b32 s{sT0}, s{sW}, 10")
            if k1 == k0:
                a(f"s_add_u32 s{sT0}, s{sT0}, {8*i*1024 + c0*CH}")
            else:
                c1 = (k1//2 + 4*(k1%2) - k1); wthr = 19*k1 - 8*i
                a(f"s_cmp_ge_u32 s{sW}, {wthr}")
                a(f"s_cselect_b32 s{sT1}, {((c1-c0)*CH) & 0xffffffff}, 0")
                a(f"s_add_u32 s{sT0}, s{sT0}, s{sT1}")
                a(f"s_add_u32 s{sT0}, s{sT0}, {(8*i*1024 + c0*CH) & 0xffffffff}")
            a(f"s_mov_b32 m0, s{sT0}")
            a(f"s_add_u32 s{sT0}, s{sT0}, s{sKVB}")
            if track: a.vmem(f"buffer_load_dwordx4 v{vOffQ}, s[8:11], s{sT0} offen lds", ("dma", i))
            else: a(f"buffer_load_dwordx4 v{vOffQ}, s[8:11], s{sT0} offen lds")
            ndma[0] += 1
    NST = [(38*(s_+1)+7)//8 for s_ in range(4)]
    dma_to(NST[0])
    a(f"s_add_u32 s{sT0}, s{sOM}, {OFF_PQM}\ns_add_u32 s{sT1}, s{sOR}, {OFF_PQR}")
    a.vmem(f"buffer_load_dwordx4 {v(vPQ1,4)}, v{vOffQ}, s[8:11], s{sT0} offen", "pq")
    a.vmem(f"buffer_load_dword v{vPQ2}, v{vL4}, s[8:11], s{sT1} offen", "pq")
    dma_to(NST[1])
    a(f"""
    s_mul_i32 s{sT0}, s{sHalf}, {4*CH}
    v_add_u32 v{vAK}, s{sT0}, v{vOffQ}
    v_lshlrev_b32 v{vT0}, 4, v{vT1}
    v_mul_u32_u24 v{vOffKV}, 320, v{vT2}
    v_add_u32 v{vOffKV}, v{vOffKV}, v{vT0}
    v_add_u32 v{vAR}, 8192, v{vL4}
    v_add_u32 v{vAR}, s{sT0}, v{vAR}
    v_add_u32 v{vAV}, 9216, v{vOffKV}
    v_add_u32 v{vAV}, s{sT0}, v{vAV}
    v_mov_b32 v{vT0}, 0x10000000
    v_cmp_gt_u32 vcc, 19, v{vT1}
    s_nop 1
    v_cndmask_b32 v{vAV}, v{vT0}, v{vAV}, vcc
    v_cmp_gt_u32 vcc, 32, v{vLane}
    s_nop 1
    v_cndmask_b32 v{vAR}, v{vT0}, v{vAR}, vcc
    v_mov_b32 v{vT0}, 0x7f000000
    v_cndmask_b32 v{vOffR}, v{vT0}, v{vL4}, vcc
    """)
    a(f"""
    s_mul_i32 s{sKV}, s{sHead}, {128*640}
    s_mul_i32 s{sT0}, s{sW}, 1280
    s_add_u32 s{sKV}, s{sKV}, s{sT0}
    """)
    for i in range(16):
        a(f"v_mov_b32 v{vO[0]+i}, 0\nv_mov_b32 v{vO[1]+i}, 0\nv_mov_b32 v{vKV+i}, 0")
    a.wait_vm("q")
    a(f"""
    v_cndmask_b32 v{vQ2[0]}, 0, v{vQ2[0]}, vcc
    v_cndmask_b32 v{vQ2[1]}, 0, v{vQ2[1]}, vcc
    v_max_f32_dpp v{vM[0]}, v{vM[0]}, v{vM[0]} row_ror:1 row_mask:0xf bank_mask:0xf
    v_max_f32_dpp v{vM[1]}, v{vM[1]}, v{vM[1]} row_ror:1 row_mask:0xf bank_mask:0xf
    v_dot2_f32_bf16 v{vT0}, v{vQ1[0]}, v{vQ1[0]}, 0
    v_dot2_f32_bf16 v{vT1}, v{vQ1[1]}, v{vQ1[1]}, 0
    v_max_f32_dpp v{vM[0]}, v{vM[0]}, v{vM[0]} row_ror:2 row_mask:0xf bank_mask:0xf
    v_max_f32_dpp v{vM[1]}, v{vM[1]}, v{vM[1]} row_ror:2 row_mask:0xf bank_mask:0xf
    v_dot2_f32_bf16 v{vT0}, v{vQ1[0]+1}, v{vQ1[0]+1}, v{vT0}
    v_dot2_f32_bf16 v{vT1}, v{vQ1[1]+1}, v{vQ1[1]+1}, v{vT1}
    v_max_f32_dpp v{vM[0]}, v{vM[0]}, v{vM[0]} row_ror:4 row_mask:0xf bank_mask:0xf
    v_max_f32_dpp v{vM[1]}, v{vM[1]}, v{vM[1]} row_ror:4 row_mask:0xf bank_mask:0xf
    v_dot2_f32_bf16 v{vT0}, v{vQ1[0]+2}, v{vQ1[0]+2}, v{vT0}
    v_dot2_f32_bf16 v{vT1}, v{vQ1[1]+2}, v{vQ1[1]+2}, v{vT1}
    v_max_f32_dpp v{vM[0]}, v{vM[0]}, v{vM[0]} row_ror:8 row_mask:0xf bank_mask:0xf
    v_max_f32_dpp v{vM[1]}, v{vM[1]}, v{vM[1]} row_ror:8 row_mask:0xf bank_mask:0xf
    v_dot2_f32_bf16 v{vT0}, v{vQ1[0]+3}, v{vQ1[0]+3}, v{vT0}
    v_dot2_f32_bf16 v{vT1}, v{vQ1[1]+3}, v{vQ1[1]+3}, v{vT1}
    v_dot2_f32_bf16 v{vT0}, v{vQ2[0]}, v{vQ2[0]}, v{vT0}
    v_dot2_f32_bf16 v{vT1}, v{vQ2[1]}, v{vQ2[1]}, v{vT1}
    v_readlane_b32 s{sT0}, v{vM[0]}, 0
    v_readlane_b32 s{sT1}, v{vM[0]}, 16
    v_readlane_b32 s{sT2}, v{vM[0]}, 32
    v_readlane_b32 s{sT3}, v{vM[0]}, 48
    s_nop 3
    s_max_u32 s{sT0}, s{sT0}, s{sT1}
    s_max_u32 s{sT2}, s{sT2}, s{sT3}
    s_max_u32 s{sF0}, s{sT0}, s{sT2}
    v_readlane_b32 s{sT0}, v{vM[1]}, 0
    v_readlane_b32 s{sT1}, v{vM[1]}, 16
    v_readlane_b32 s{sT2}, v{vM[1]}, 32
    v_readlane_b32 s{sT3}, v{vM[1]}, 48
    s_nop 3
    s_max_u32 s{sT0}, s{sT0}, s{sT1}
    s_max_u32 s{sT2}, s{sT2}, s{sT3}
    s_max_u32 s{sT1}, s{sT0}, s{sT2}
    s_mov_b32 s{sT0}, s{sF0}
    v_mov_b32 v{vQ2[0]+1}, 0
    v_mov_b32 v{vQ2[0]+2}, 0
    v_mov_b32 v{vQ2[0]+3}, v{vQ2[0]}
    v_mov_b32 v{vQ2[1]+1}, 0
    v_mov_b32 v{vQ2[1]+2}, 0
    v_mov_b32 v{vQ2[1]+3}, v{vQ2[1]}
    v_mov_b32 v{vT2}, v{vT0}
    v_mov_b32 v{vT3}, v{vT1}
    v_mov_b32 v{vM[1]}, s{sT0}
    v_add_f32 v{vM[1]}, s{sT1}, v{vM[1]}
    v_permlane32_swap_b32 v{vT0}, v{vT2}
    v_permlane32_swap_b32 v{vT1}, v{vT3}
    s_nop 1
    v_add_f32 v{vT0}, v{vT0}, v{vT2}
    v_add_f32 v{vT1}, v{vT1}, v{vT3}
    v_mul_f32 v{vT0}, v{vT0}, v{vM[1]}
    v_mul_f32 v{vT1}, v{vT1}, v{vM[1]}
    v_sqrt_f32 v{vT0}, v{vT0}
    v_sqrt_f32 v{vT1}, v{vT1}
    s_nop 0
    v_mul_f32 v{vM[0]}, 0x3f828f5c, v{vT0}
    v_mul_f32 v{vM[1]}, 0x3f828f5c, v{vT1}
    v_add_f32 v{vM[0]}, 0x3a83126f, v{vM[0]}
    v_add_f32 v{vM[1]}, 0x3a83126f, v{vM[1]}
    v_max_f32 v{vT0}, v{vM[0]}, v{vM[1]}
    v_mov_b32 v{vT1}, 0x42400000
    v_cmp_nle_f32 vcc, v{vT0}, v{vT1}
    v_cmp_u_f32 s[{sF0}:{sF0+1}], v{vM[0]}, v{vM[1]}
    s_nop 3
    s_or_b64 vcc, vcc, s[{sF0}:{sF0+1}]
    s_cmp_lg_u64 vcc, 0
    s_cselect_b32 s{sFlag}, 1, 0
    v_mov_b32 v{vT2}, s{sFlag}
    s_lshl_b32 s{sT0}, s{sW}, 2
    s_add_u32 s{sT0}, s{sT0}, {8*CH}
    v_mov_b32 v{vT3}, s{sT0}
    """)
    a.ds(f"ds_write_b32 v{vT3}, v{vT2}", "flag")
    def set_negm():
        for q in range(2):
            a(f"v_sub_f32 v{vNM[q]}, 0, v{vM[q]}")
            for i in range(1,16): a(f"v_mov_b32 v{vNM[q]+i}, v{vNM[q]}")
    set_negm()
    def kv_loads(c):
        for g in range(2):
            a(f"s_add_u32 s{sT0}, s{sKV}, {OFF_PK + c*16*640 + g*640}")
            a.vmem(f"buffer_load_dwordx4 {v(vPK[g],4)}, v{vOffKV}, s[8:11], s{sT0} offen", ("kv",c))
            a(f"s_add_u32 s{sT0}, s{sKV}, {OFF_VA + c*16*640 + g*640}")
            a.vmem(f"buffer_load_dwordx4 {v(vPK[g]+4,4)}, v{vOffKV}, s[8:11], s{sT0} offen", ("kv",c))
    def kv_mfma():
        for g in range(2):
            a(f"v_mfma_f32_32x32x16_bf16 {v(vKV,16)}, {v(vPK[g],4)}, {v(vPK[g]+4,4)}, {v(vKV,16)}")
    nst[0]=1
    stamp()
    a.wait_vm(("dma", NST[0]-1))
    a.wait_lg_all()
    a("s_barrier")
    stamp()
    a(f"v_mov_b32 v{vT3}, {8*CH}")
    a.ds(f"ds_read_b128 {v(vS[0],4)}, v{vT3}")
    a.ds(f"ds_read_b128 {v(vS[0]+4,4)}, v{vT3} offset:16")
    a.wait_lg_all()
    for i in range(1,8): a(f"v_or_b32 v{vS[0]}, v{vS[0]}, v{vS[0]+i}")
    a(f"""
    s_nop 0
    v_readfirstlane_b32 s{sFlag}, v{vS[0]}
    s_nop 3
    s_cmp_eq_u32 s{sFlag}, 0
    s_cbranch_scc1 {name}_fast
    """)
    saved_n = ndma[0]
    a.c("fallback: load everything, compute true row max over all keys")
    dma_to(19, track=False)
    ndma[0] = saved_n
    a("s_waitcnt vmcnt(0)\ns_barrier")
    a(f"""
    v_mov_b32 v{vM[0]}, 0xff7fffff
    v_mov_b32 v{vM[1]}, 0xff7fffff
    v_mov_b32 v{vT0}, v{vOffQ}
    v_add_u32 v{vT1}, 8192, v{vL4}
    s_mov_b32 s{sT0}, 0
    {name}_fb_chunk:
    """)
    for t in range(8):
        a(f"ds_read_b128 {v(vK1[0],4)}, v{vT0} offset:{t*1024}")
        if t%2==0: a(f"ds_read2_b32 {v(vKR[0],2)}, v{vT1} offset0:{t*32} offset1:{t*32+32}")
        a("s_waitcnt lgkmcnt(0)")
        for q in range(2):
            a(f"v_mfma_f32_32x32x16_bf16 {v(vS[q],16)}, {v(vK1[0],4)}, {v(vQ1[q],4)}, 0")
            a(f"v_mfma_f32_32x32x8_bf16 {v(vS[q],16)}, {v(vKR[0],2)}, {v(vQ2[q]+2*(t&1),2)}, {v(vS[q],16)}")
        a("s_nop 15\ns_nop 3")
        for q in range(2):
            for j in range(0,16,2): a(f"v_max3_f32 v{vM[q]}, v{vM[q]}, v{vS[q]+j}, v{vS[q]+j+1}")
    a(f"""
    v_add_u32 v{vT0}, {CH}, v{vT0}
    v_add_u32 v{vT1}, {CH}, v{vT1}
    s_add_u32 s{sT0}, s{sT0}, 1
    s_cmp_lt_u32 s{sT0}, 8
    s_cbranch_scc1 {name}_fb_chunk
    v_mov_b32 v{vT0}, v{vM[0]}
    v_mov_b32 v{vT1}, v{vM[1]}
    s_nop 1
    v_permlane32_swap_b32 v{vM[0]}, v{vT0}
    v_permlane32_swap_b32 v{vM[1]}, v{vT1}
    s_nop 1
    v_max_f32 v{vM[0]}, v{vM[0]}, v{vT0}
    v_max_f32 v{vM[1]}, v{vM[1]}, v{vT1}
    """)
    set_negm()
    a(f"{name}_fast:")
    def koff(t): return (t//8)*CH + (t%8)*1024
    def roff(t): return (t//8)*CH + (t%8)*128
    def voff(t,j): return (t//8)*CH + ((t%8)*2+j)*640
    base = [0]; rbase = [0]
    def rdK(t):
        a.ds(f"ds_read_b128 {v(vK1[t&1],4)}, v{vAK} offset:{koff(t)-base[0]}", ("k",t))
        if t%2==0:
            ro = roff(t)-rbase[0]
            if ro//4+32 > 255:
                a(f"v_add_u32 v{vAR}, {ro}, v{vAR}"); rbase[0] += ro; ro = 0
            a.ds(f"ds_read2_b32 {v(vKR[(t//2)&1],2)}, v{vAR} offset0:{ro//4} offset1:{ro//4+32}", ("k",t))
    def rdV(t):
        a.ds(f"ds_read_b128 {v(vV[t&1],4)}, v{vAV} offset:{voff(t,0)-base[0]}", ("v",t))
        a.ds(f"ds_read_b128 {v(vV[t&1]+4,4)}, v{vAV} offset:{voff(t,1)-base[0]}", ("v",t))
    NT = 32
    def S1(u):
        t,q = u//2,u%2
        a(f"v_mfma_f32_32x32x16_bf16 {v(vS[u&1],16)}, {v(vK1[t&1],4)}, {v(vQ1[q],4)}, {v(vNM[q],16)}")
    def S2(u):
        t,q = u//2,u%2
        a(f"v_mfma_f32_32x32x8_bf16 {v(vS[u&1],16)}, {v(vKR[(t//2)&1],2)}, {v(vQ2[q]+2*(t&1),2)}, {v(vS[u&1],16)}")
    def PV(u,j):
        t,q = u//2,u%2
        a(f"v_mfma_f32_32x32x16_bf16 {v(vO[q],16)}, {v(vV[t&1]+4*j,4)}, {v(vP+4*j,4)}, {v(vO[q],16)}")
    kv_loads(0)
    rdK(0); rdV(0); rdK(1)
    a.wait_lg(("k",0))
    S1(0); S2(0)
    a("s_nop 7\ns_nop 3")
    NU = 2*NT
    for u in range(NU):
        t,q = u//2,u%2
        cur = vS[u&1]
        E = lambda i: a(f"v_exp_f32 v{cur+i}, v{cur+i}")
        C = lambda p: a(f"v_cvt_pk_bf16_f32 v{vP+p}, v{cur+2*p}, v{cur+2*p+1}")
        def G(g):
            for i in range(4*g,4*g+4): E(i)
            C(2*g); C(2*g+1)
        if q == 0 and t == 16:
            for r in (vAK, vAV): a(f"v_add_u32 v{r}, {2*CH}, v{r}")
            base[0] += 2*CH
        if q == 0:
            if (t+2) % 8 == 0 and t+2 < NT:
                s_ = (t+2)//8
                a.wait_vm(("dma", NST[s_]-1))
                a("s_barrier")
                if s_+1 <= 3: dma_to(NST[s_+1])
            if t % 3 == 0 and 1 <= t//3 <= 8:
                i = t//3
                a.wait_vm(("kv", i-1))
                kv_mfma()
                if i <= 7: kv_loads(i)
        if u+1 < NU:
            tn = (u+1)//2
            a.wait_lg(("k", tn))
            S1(u+1)
        G(0)
        if u > 0: PV(u-1, 1)
        if q == 0:
            if t+1 < NT: rdV(t+1)
        else:
            if t+2 < NT: rdK(t+2)
        G(1)
        if u+1 < NU: S2(u+1)
        G(2)
        a.wait_lg(("v", t))
        PV(u, 0)
        G(3)
    a("s_nop 1")
    PV(NU-1, 1)
    stamp()
    a("s_nop 7\ns_nop 3")
    a("s_barrier")
    a(f"s_mul_i32 s{sT0}, s{sW}, 3072\nv_add_u32 v{vT0}, s{sT0}, v{vOffQ}")
    a(f"s_cmp_eq_u32 s{sHalf}, 0\ns_cbranch_scc1 {name}_h0")
    for qd in range(3): a(f"ds_write_b128 v{vT0}, {v(vO[0]+4*qd,4)} offset:{1024*qd}")
    a("s_waitcnt lgkmcnt(0)")
    for i in range(12): a(f"v_mov_b32 v{vO[0]+i}, v{vO[1]+i}")
    a(f"s_branch {name}_h1\n{name}_h0:")
    for qd in range(3): a(f"ds_write_b128 v{vT0}, {v(vO[1]+4*qd,4)} offset:{1024*qd}")
    a(f"{name}_h1:")
    for qd in range(3): a(f"ds_write_b128 v{vT0}, {v(vKV+4*qd,4)} offset:{32768+1024*qd}")
    a("s_waitcnt lgkmcnt(0)\ns_barrier")
    a(f"s_xor_b32 s{sT1}, s{sW}, 4\ns_mul_i32 s{sT1}, s{sT1}, 3072\nv_add_u32 v{vT1}, s{sT1}, v{vOffQ}")
    for qd in range(3): a(f"ds_read_b128 {v(vS[0]+4*qd,4)}, v{vT1} offset:{1024*qd}")
    for qd in range(3):
        for w in range(4): a(f"ds_read_b128 {v(vS[1]+4*w,4)}, v{vOffQ} offset:{32768+w*3072+qd*1024}")
        for w in range(4): a(f"ds_read_b128 {v(vNM[0]+4*w,4)}, v{vOffQ} offset:{32768+(w+4)*3072+qd*1024}")
        a("s_waitcnt lgkmcnt(0)")
        if qd == 0:
            for i in range(12): a(f"v_add_f32 v{vO[0]+i}, v{vO[0]+i}, v{vS[0]+i}")
        for i in range(4):
            a(f"v_add_f32 v{vS[1]+i}, v{vS[1]+i}, v{vS[1]+4+i}")
            a(f"v_add_f32 v{vS[1]+8+i}, v{vS[1]+8+i}, v{vS[1]+12+i}")
            a(f"v_add_f32 v{vNM[0]+i}, v{vNM[0]+i}, v{vNM[0]+4+i}")
            a(f"v_add_f32 v{vNM[0]+8+i}, v{vNM[0]+8+i}, v{vNM[0]+12+i}")
        for i in range(4):
            a(f"v_add_f32 v{vS[1]+i}, v{vS[1]+i}, v{vS[1]+8+i}")
            a(f"v_add_f32 v{vNM[0]+i}, v{vNM[0]+i}, v{vNM[0]+8+i}")
        for i in range(4):
            a(f"v_add_f32 v{vKV+4*qd+i}, v{vS[1]+i}, v{vNM[0]+i}")
    def norm_store(acc, offM, offR, eps):
        a(f"v_mov_b32 v{vT0}, v{acc+10}\nv_mov_b32 v{vT1}, v{acc+10}\ns_nop 1")
        a(f"v_permlane32_swap_b32 v{vT0}, v{vT1}\ns_nop 1")
        if eps: a(f"v_add_f32 v{vT0}, 0x358637bd, v{vT0}")
        a(f"v_rcp_f32 v{vT0}, v{vT0}\ns_nop 0")
        for i in range(10): a(f"v_mul_f32 v{acc+i}, v{acc+i}, v{vT0}")
        for p in range(5): a(f"v_cvt_pk_bf16_f32 v{vP+p}, v{acc+2*p}, v{acc+2*p+1}")
        a(f"s_add_u32 s{sT0}, s{sOM}, {offM}\ns_add_u32 s{sT1}, s{sOR}, {offR}")
        a.vmem(f"buffer_store_dwordx4 {v(vP,4)}, v{vOffQ}, s[8:11], s{sT0} offen", "st")
        a.vmem(f"buffer_store_dword v{vP+4}, v{vOffR}, s[8:11], s{sT1} offen", "st")
    for p in range(4): a(f"v_cvt_pk_bf16_f32 v{vK1[0]+p}, v{vKV+2*p}, v{vKV+2*p+1}")
    a(f"v_cvt_pk_bf16_f32 v{vT0}, v{vKV+8}, v{vKV+9}")
    a(f"v_cmp_gt_u32 vcc, 32, v{vLane}")
    a.wait_vm("pq")
    a(f"""
    v_mov_b32 v{vKR[0]+1}, 0
    v_mov_b32 v{vPQ2+1}, 0
    v_cndmask_b32 v{vKR[0]}, 0, v{vT0}, vcc
    v_cndmask_b32 v{vPQ2}, 0, v{vPQ2}, vcc
    s_nop 1
    v_mfma_f32_32x32x16_bf16 {v(vO[1],16)}, {v(vK1[0],4)}, {v(vPQ1,4)}, 0
    v_mfma_f32_32x32x8_bf16 {v(vO[1],16)}, {v(vKR[0],2)}, {v(vPQ2,2)}, {v(vO[1],16)}
    """)
    norm_store(vO[0], OFF_OBM, OFF_OBR, False)
    a("s_nop 3")
    vPsave = vP
    a("s_waitcnt vmcnt(0)")
    a.vm=[]
    norm_store(vO[1], OFF_OAM, OFF_OAR, True)
    if stamps:
        a("s_waitcnt vmcnt(0)")
        stamp()
        a("s_memrealtime s[62:63]")
        a("s_waitcnt lgkmcnt(0)")
        a(f"s_lshl_b32 s{sT0}, s2, 3\ns_add_u32 s{sT0}, s{sT0}, s{sW}\ns_lshl_b32 s{sT0}, s{sT0}, 5\ns_add_u32 s{sT0}, s{sT0}, 0x2100000")
        a("s_mov_b32 s10, 0x4000000")
        for i in range(1,nst[0]):
            a(f"s_sub_u32 s{40+2*i}, s{40+2*i}, s40")
        a("v_mov_b32 v2, s60\nv_mov_b32 v3, s42\nv_mov_b32 v4, s44\nv_mov_b32 v5, s46\nv_mov_b32 v6, s48\nv_mov_b32 v7, s62\nv_mov_b32 v8, 0\nv_mov_b32 v9, 0")
        a(f"v_mov_b32 v10, 0")
        a(f"buffer_store_dwordx4 v[2:5], v10, s[8:11], s{sT0} offen")
        a(f"buffer_store_dwordx4 v[6:9], v10, s[8:11], s{sT0} offen offset:16")
    a(f"{name}_end:\ns_endpgm")
    return kernel_head(name) + a.text() + kernel_desc(name, NV)
```

```python
from asmlib import *
from model import *
LDS_K3 = 163840
WB_OFF = 82944
def gen_k3(name="k3_kernel", stamps=False):
    a = Asm()
    vLane,vT0,vT1,vT2,vT3,vTok,vHf,vL16 = 1,2,3,4,5,6,7,8
    vWR, vWR2, vG = 9, 10, 11
    vWRt = 12
    vWF = [16, 28]
    vOM = [40, 76]
    vD = [112, 160]
    NV = 208
    sW,sRt,sKq,sRow,sCol,sT0,sT1,sT2,sT3,sQt = 20,21,22,23,24,25,26,27,28,29
    a(f"""
    s_cmp_ge_u32 s2, 256
    s_cbranch_scc1 {name}_end
    s_load_dwordx2 s[4:5], s[0:1], 16
    s_load_dwordx2 s[6:7], s[0:1], 40
    s_load_dwordx2 s[16:17], s[0:1], 56
    s_load_dwordx2 s[18:19], s[0:1], 72
    s_memtime s[50:51]
    s_memrealtime s[60:61]
    v_lshrrev_b32 v{vT0}, 6, v0
    v_and_b32 v{vLane}, 63, v0
    v_readfirstlane_b32 s{sW}, v{vT0}
    v_lshlrev_b32 v{vL16}, 4, v{vLane}
    v_and_b32 v{vTok}, 31, v{vLane}
    v_lshrrev_b32 v{vHf}, 5, v{vLane}
    s_and_b32 s{sRow}, s2, 7
    s_lshl_b32 s{sRow}, s{sRow}, 2
    s_lshr_b32 s{sT0}, s2, 3
    s_and_b32 s{sCol}, s{sT0}, 3
    s_add_u32 s{sRow}, s{sRow}, s{sCol}
    s_lshr_b32 s{sCol}, s{sT0}, 2
    s_and_b32 s{sRt}, s{sW}, 1
    s_lshr_b32 s{sKq}, s{sW}, 1
    s_lshl_b32 s{sQt}, s{sRow}, 1
    s_add_u32 s{sQt}, s{sQt}, s{sRt}
    s_waitcnt lgkmcnt(0)
    s_mov_b32 s8, s4
    s_mov_b32 s9, s5
    s_mov_b32 s10, {576*576*2}
    s_mov_b32 s11, 0x00020000
    s_mov_b32 s36, s6
    s_mov_b32 s37, s7
    s_mov_b32 s38, {576*576*2}
    s_mov_b32 s39, 0x00020000
    s_mov_b32 s12, s18
    s_mov_b32 s13, s19
    s_mov_b32 s14, {WS_END}
    s_mov_b32 s15, 0x00020000
    s_mov_b32 s32, s16
    s_mov_b32 s33, s17
    s_mov_b32 s34, {S*D*2}
    s_mov_b32 s35, 0x00020000
    """)
    def o_loads(br, tag):
        offM = OFF_OAM if br==0 else OFF_OBM
        offR = OFF_OAR if br==0 else OFF_OBR
        a(f"""
        s_lshl_b32 s{sT0}, s{sKq}, 9
        s_add_u32 s{sT0}, s{sT0}, s{sQt}
        s_lshl_b32 s{sT0}, s{sT0}, 10
        s_add_u32 s{sT0}, s{sT0}, {offM}
        """)
        for i in range(8):
            a.vmem(f"buffer_load_dwordx4 {v(vOM[br]+4*i,4)}, v{vL16}, s[12:15], s{sT0} offen", tag)
            if i<7: a(f"s_add_u32 s{sT0}, s{sT0}, 65536")
        a(f"""
        s_lshl_b32 s{sT0}, s{sKq}, 16
        s_lshl_b32 s{sT1}, s{sQt}, 7
        s_add_u32 s{sT0}, s{sT0}, s{sT1}
        s_add_u32 s{sT0}, s{sT0}, {offR}
        v_lshlrev_b32 v{vT1}, 2, v{vTok}
        v_lshlrev_b32 v{vT2}, 15, v{vHf}
        v_add_u32 v{vT1}, v{vT1}, v{vT2}
        """)
        for i in range(4):
            a.vmem(f"buffer_load_dword v{vOM[br]+32+i}, v{vT1}, s[12:15], s{sT0} offen", tag)
            if i<3: a(f"s_add_u32 s{sT0}, s{sT0}, 8192")
    def w_dma(br, tag, nmax):
        srd = "s[8:11]" if br==0 else "s[36:39]"
        base = 0 if br==0 else WB_OFF
        for j in range(11):
            if j == 10:
                a(f"s_cmp_lg_u32 s{sW}, 0\ns_cbranch_scc1 {name}_skip{br}")
            a(f"""
            s_add_u32 s{sT0}, s{sW}, {8*j}
            s_lshl_b32 s{sT1}, s{sT0}, 6
            v_add_u32 v{vT0}, s{sT1}, v{vLane}
            v_mul_u32_u24 v{vT1}, 7282, v{vT0}
            v_lshrrev_b32 v{vT1}, 16, v{vT1}
            v_mul_u32_u24 v{vT2}, 9, v{vT1}
            v_sub_u32 v{vT2}, v{vT0}, v{vT2}
            v_mul_u32_u24 v{vT1}, 1152, v{vT1}
            v_lshlrev_b32 v{vT2}, 4, v{vT2}
            v_add_u32 v{vT1}, v{vT1}, v{vT2}
            s_lshl_b32 s{sT0}, s{sT0}, 10
            s_add_u32 m0, s{sT0}, {base}
            s_mul_i32 s{sT1}, s{sCol}, 144
            """)
            a.vmem(f"buffer_load_dwordx4 v{vT1}, {srd}, s{sT1} offen lds", tag)
            if j == 10: a(f"{name}_skip{br}:")
    w_dma(0, "wa", 81)
    o_loads(0, "oa")
    a(f"""
    s_lshl_b32 s{sT1}, s{sQt}, 7
    s_add_u32 s{sT1}, s{sT1}, {OFF_G}
    v_lshlrev_b32 v{vT2}, 2, v{vTok}
    """)
    a.vmem(f"buffer_load_dword v{vG}, v{vT2}, s[12:15], s{sT1} offen", "oa")
    w_dma(1, "wb", 81)
    o_loads(1, "ob")
    a(f"""
    v_lshrrev_b32 v{vT0}, 4, v{vLane}
    v_and_b32 v{vT1}, 1, v{vT0}            ; mhalf
    v_lshrrev_b32 v{vT0}, 1, v{vT0}        ; khalf
    v_and_b32 v{vT2}, 15, v{vLane}
    v_lshrrev_b32 v{vT3}, 2, v{vT2}        ; r
    v_and_b32 v{vT2}, 3, v{vT2}            ; cq
    v_lshlrev_b32 v{vT1}, 5, v{vT1}
    v_lshlrev_b32 v{vT2}, 3, v{vT2}
    v_add_u32 v{vT1}, v{vT1}, v{vT2}
    v_mul_u32_u24 v{vT3}, 144, v{vT3}
    v_add_u32 v{vT1}, v{vT1}, v{vT3}
    s_mul_i32 s{sT0}, s{sKq}, {8*18*144}
    v_add_u32 v{vT1}, s{sT0}, v{vT1}
    v_mul_u32_u24 v{vT2}, {4*144}, v{vT0}
    v_add_u32 v{vWR}, v{vT1}, v{vT2}
    v_mul_u32_u24 v{vT2}, {4*18*144}, v{vT0}
    v_add_u32 v{vWR2}, v{vT1}, v{vT2}
    """)
    for br in range(2):
        for i in range(48): a(f"v_mov_b32 v{vD[br]+i}, 0")
    if stamps: a("s_memtime s[52:53]")
    def steps(br):
        st = []
        for i in range(8):
            off = 0 if i%2==0 else 2
            st.append((vWR, [(18*i+off+8*u)*144 for u in range(2)], v(vOM[br]+4*i,4), i))
        st.append((vWR2, [(18*(2*u)+16)*144 for u in range(2)], v(vOM[br]+32,4), 8))
        return st
    def rd(br, k, st):
        reg, offs, _, i = st[k]
        for tl in range(3):
            for u in range(2):
                a.ds(f"ds_read_b64_tr_b16 {v(vWF[k&1]+4*tl+2*u,2)}, v{reg} offset:{offs[u]+64*tl}", (br,k))
    for br in range(2):
        st = steps(br)
        if br == 0:
            a.wait_vm("wa","oa")
            a("s_barrier")
            if stamps: a("s_memtime s[54:55]")
        else:
            a.wait_vm("wb","ob")
            a("s_barrier")
            a(f"""
            s_cmp_gt_u32 s{sW}, 2
            s_cbranch_scc1 {name}_nolate
            s_lshl_b32 s{sT1}, s{sW}, 6
            v_add_u32 v{vT0}, s{sT1}, v{vLane}
            v_mul_u32_u24 v{vT1}, 7282, v{vT0}
            v_lshrrev_b32 v{vT1}, 16, v{vT1}
            v_mul_u32_u24 v{vT2}, 9, v{vT1}
            v_sub_u32 v{vT2}, v{vT0}, v{vT2}
            v_add_u32 v{vT1}, 560, v{vT1}
            v_mul_u32_u24 v{vT1}, 1152, v{vT1}
            v_lshlrev_b32 v{vT2}, 4, v{vT2}
            v_add_u32 v{vT1}, v{vT1}, v{vT2}
            s_lshl_b32 m0, s{sW}, 10
            s_mul_i32 s{sT1}, s{sCol}, 144
            buffer_load_dwordx4 v{vT1}, s[36:39], s{sT1} offen lds
            s_waitcnt vmcnt(0)
            {name}_nolate:
            s_barrier
            v_add_u32 v{vWR}, {WB_OFF}, v{vWR}
            v_add_u32 v{vWR2}, {WB_OFF}, v{vWR2}
            """)
        rd(br, 0, st)
        for k in range(9):
            if k+1 < 9:
                if br==1 and k+1==7:
                    a(f"""
                    s_cmp_eq_u32 s{sKq}, 3
                    s_cselect_b32 s{sT0}, {(-(WB_OFF + 560*144)) & 0xffffffff}, 0
                    v_add_u32 v{vWRt}, s{sT0}, v{vWR}
                    """)
                    reg, offs, o, i = st[7]
                    st[7] = (vWRt, offs, o, i)
                rd(br, k+1, st)
            a.wait_lg((br,k))
            for tl in range(3):
                a(f"v_mfma_f32_32x32x16_bf16 {v(vD[br]+16*tl,16)}, {v(vWF[k&1]+4*tl,4)}, {st[k][2]}, {v(vD[br]+16*tl,16)}")
    a("s_nop 15\ns_nop 3")
    a(f"v_sub_f32 v{vT0}, 1.0, v{vG}")
    for i in range(48):
        a(f"v_mul_f32 v{vD[0]+i}, v{vD[0]+i}, v{vG}")
        a(f"v_fmac_f32 v{vD[0]+i}, v{vD[1]+i}, v{vT0}")
    a("s_barrier")
    a(f"""
    s_lshl_b32 s{sT0}, s{sRt}, 5
    v_add_u32 v{vT0}, s{sT0}, v{vTok}
    v_mul_u32_u24 v{vT0}, 304, v{vT0}
    s_mul_i32 s{sT0}, s{sKq}, {64*304}
    v_add_u32 v{vT0}, s{sT0}, v{vT0}
    v_lshlrev_b32 v{vT1}, 4, v{vHf}
    v_add_u32 v{vT0}, v{vT0}, v{vT1}
    """)
    for tl in range(3):
        for aa in range(4):
            if tl==2 and aa>0: continue
            a(f"ds_write_b128 v{vT0}, {v(vD[0]+16*tl+4*aa,4)} offset:{(32*tl+8*aa)*4}")
    a("s_waitcnt lgkmcnt(0)\ns_barrier")
    def final(taskreg):
        a(f"""
        v_mul_u32_u24 v{vT1}, 7282, v{taskreg}
        v_lshrrev_b32 v{vT1}, 16, v{vT1}          ; token
        v_mul_u32_u24 v{vT2}, 9, v{vT1}
        v_sub_u32 v{vT2}, v{taskreg}, v{vT2}      ; chunk
        v_mul_u32_u24 v{vT3}, 304, v{vT1}
        v_lshlrev_b32 v{vWRt}, 5, v{vT2}
        v_add_u32 v{vT3}, v{vT3}, v{vWRt}
        """)
        for kq in range(4):
            a(f"ds_read_b128 {v(vOM[0]+8*kq,4)}, v{vT3} offset:{kq*64*304}")
            a(f"ds_read_b128 {v(vOM[0]+8*kq+4,4)}, v{vT3} offset:{kq*64*304+16}")
        a(f"""
        s_lshl_b32 s{sT0}, s{sRow}, 6
        v_add_u32 v{vT1}, s{sT0}, v{vT1}
        v_mul_u32_u24 v{vT1}, 1152, v{vT1}
        v_lshlrev_b32 v{vT2}, 4, v{vT2}
        v_add_u32 v{vT1}, v{vT1}, v{vT2}
        s_mul_i32 s{sT0}, s{sCol}, 144
        s_waitcnt lgkmcnt(0)
        """)
        for i in range(8):
            a(f"v_add_f32 v{vOM[0]+i}, v{vOM[0]+i}, v{vOM[0]+8+i}")
            a(f"v_add_f32 v{vOM[0]+16+i}, v{vOM[0]+16+i}, v{vOM[0]+24+i}")
        for i in range(8): a(f"v_add_f32 v{vOM[0]+i}, v{vOM[0]+i}, v{vOM[0]+16+i}")
        for p in range(4): a(f"v_cvt_pk_bf16_f32 v{vOM[1]+p}, v{vOM[0]+2*p}, v{vOM[0]+2*p+1}")
        a(f"buffer_store_dwordx4 {v(vOM[1],4)}, v{vT1}, s[32:35], s{sT0} offen")
    a(f"v_mov_b32 v{vT0}, v0")
    a(f"v_and_b32 v{vT0}, 0x3ff, v{vT0}")
    final(vT0)
    a(f"s_cmp_lg_u32 s{sW}, 0\ns_cbranch_scc1 {name}_fin")
    a(f"v_add_u32 v{vT0}, 512, v{vLane}\ns_nop 1")
    final(vT0)
    a(f"{name}_fin:")
    if stamps:
        a("s_waitcnt vmcnt(0)\ns_memtime s[58:59]\ns_memrealtime s[62:63]\ns_waitcnt lgkmcnt(0)")
        a(f"s_lshl_b32 s28, s2, 3\ns_add_u32 s28, s28, s{sW}\ns_lshl_b32 s28, s28, 5\ns_add_u32 s28, s28, 0x2200000\ns_mov_b32 s14, 0x4000000")
        a("s_sub_u32 s52, s52, s50\ns_sub_u32 s54, s54, s50\ns_sub_u32 s58, s58, s50")
        a("v_mov_b32 v2, s60\nv_mov_b32 v3, s52\nv_mov_b32 v4, s54\nv_mov_b32 v5, s54\nv_mov_b32 v6, s58\nv_mov_b32 v7, s62\nv_mov_b32 v8, 0\nv_mov_b32 v9, 0\nv_mov_b32 v10, 0")
        a("buffer_store_dwordx4 v[2:5], v10, s[12:15], s28 offen\nbuffer_store_dwordx4 v[6:9], v10, s[12:15], s28 offen offset:16")
    a(f"{name}_end:\ns_endpgm")
    return kernel_head(name) + a.text() + kernel_desc(name, NV)
```

```python
import sys
sys.path.insert(0,'dev')
from k1d import gen_k1e, LDS_K1D
from k2 import gen_k2, LDS_K2
from k3 import gen_k3, LDS_K3
ref = open('gated_mix__linear_attn_block__mha_block__prompt.s.ref').read().split("\n")
hdr = [l for l in ref if l.startswith(";") and "@launch" not in l and "Override" not in l and "grid=ceil" not in l]
hdr = hdr[:12]
def build(path, stamps=False, sc=""):
    src = "\n".join(hdr) + f"""
; @launch kernel=k1_kernel grid=(256,1,1) block=(640,1,1) lds={LDS_K1D}
; @launch kernel=k2_kernel grid=(256,1,1) block=(512,1,1) lds={LDS_K2}
; @launch kernel=k3_kernel grid=(256,1,1) block=(512,1,1) lds={LDS_K3}
.amdgcn_target "amdgcn-amd-amdhsa--gfx950"
.text
""" + gen_k1e(stamps=stamps, sc=sc) + gen_k2(stamps=stamps) + gen_k3(stamps=stamps)
    open(path,"w").write(src)
    return src
if __name__=="__main__":
    build(sys.argv[1] if len(sys.argv)>1 else "gated_mix__linear_attn_block__mha_block__prompt.s")
    build("a_plain.s"); build("a_sc1.s", sc="sc1"); build("a_nt.s", sc="nt"); build("stamps.s", stamps=True)
```

```python
from asmlib import *
from model import *
from k1d import QKV, SLOT, BIG
LDS_F = 163840
NSV = 4
FLAGS = 8*CH
C1 = 0
C2B = 16
C2A = 24
class QKVF(QKV):
    def loader_x_setup(self):
        a=self.a; s=self
        a(f"""
        v_lshrrev_b32 v{s.vT0}, 3, v{s.vLane}
        s_lshl_b32 s{s.sT0}, s{s.sW}, 3
        v_add_u32 v{s.vT0}, s{s.sT0}, v{s.vT0}
        v_lshrrev_b32 v{s.vT1}, 1, v{s.vT0}
        v_and_b32 v{s.vT1}, 7, v{s.vT1}
        v_and_b32 v{s.vT2}, 7, v{s.vLane}
        v_xor_b32 v{s.vT1}, v{s.vT1}, v{s.vT2}
        v_lshlrev_b32 v{s.vT1}, 4, v{s.vT1}
        s_lshl_b32 s{s.sT0}, s{s.sR}, 7
        v_add_u32 v{s.vT0}, s{s.sT0}, v{s.vT0}
        v_mul_u32_u24 v{s.vT0}, 1152, v{s.vT0}
        v_add_u32 v{s.vXG}, v{s.vT0}, v{s.vT1}
        s_lshl_b32 s{s.sM}, s{s.sW}, 10
        """)
    def chunk4(self, slot, c, far):
        a=self.a; s=self
        a(f"s_mov_b64 exec, s[{s.sMask}:{s.sMask+1}]")
        for k in range(8):
            a(f"s_add_u32 m0, s{s.sM}, {slot + k*4096}")
            if far:
                a("s_nop 0")
                a(f"global_load_lds_dwordx4 {v(s.vWG,2)}, off")
                a(f"v_lshl_add_u64 {v(s.vWG,2)}, {v(s.vWG,2)}, 0, s[72:73]")
            else:
                a(f"s_mov_b32 s{s.sT0}, {(c*64 + 8*k)*3456}")
                a(f"buffer_load_dwordx4 v{s.vWG}, s[72:75], s{s.sT0} offen lds")
        a("s_mov_b64 exec, -1")
        for k in range(4):
            a(f"s_add_u32 m0, s{s.sM}, {slot + 32768 + k*4096}")
            a(f"s_mov_b32 s{s.sT0}, {c*128 + k*32*1152}")
            a(f"buffer_load_dwordx4 v{s.vXG}, s[8:11], s{s.sT0} offen lds")
    def loader4(self, lbl, done_label):
        a=self.a; s=self
        n = 12
        for far in (False, True):
            if far:
                a(f"{lbl}_far:")
                s.setup_w()
                a(f"s_mov_b32 s72, {8*3456}\ns_mov_b32 s73, 0")
            else:
                s.loader_setup_w(lbl)
            s.chunk4(0, 0, far)
            a(f"v_lshlrev_b32 v{s.vT0}, 1, v{s.vLane}")
            for c in range(9): a(f"buffer_load_ushort v{s.vD+c}, v{s.vT0}, s[4:7], 0 offen offset:{128*c}")
            s.chunk4(SLOT, 1, far)
            a(f"s_waitcnt vmcnt({n})")
            for c in range(3): s.loader_gate(c*SLOT, c)
            a("s_waitcnt lgkmcnt(0)\ns_barrier")
            s.chunk4(2*SLOT, 2, far)
            for G in range(8):
                nout = n if G+2 <= 8 else 0
                a(f"s_waitcnt vmcnt({nout}) lgkmcnt(0)\ns_barrier")
                if G+3 <= 8:
                    s.loader_gate((G%3)*SLOT, G+3)
                    s.chunk4((G%3)*SLOT, G+3, far)
            a("s_barrier")
            if not far: a(f"s_branch {done_label}")
    def gemm3(self, isv, ch, lbl):
        a=self.a; s=self
        ntile = 4 if ch==0 else 3
        nr = 1 + 2*ntile
        def reads(st, b):
            a(f"ds_read_b128 {v(s.vXF[b],4)}, v{s.vXR[st]}")
            for tl in range(ntile):
                for u in range(2):
                    a(f"ds_read_b64_tr_b16 {v(s.vWF[b]+4*tl+2*u,2)}, v{s.vWR[tl]} offset:{(16*st+4*u)*512}")
        def mm(b):
            for tl in range(ntile):
                X, W = v(s.vXF[b],4), v(s.vWF[b]+4*tl,4)
                A,B = (X,W) if isv else (W,X)
                a(f"v_mfma_f32_32x32x16_bf16 {v(s.vD+16*tl,16)}, {A}, {B}, {v(s.vD+16*tl,16)}")
        a("s_barrier")
        reads(0,0)
        a(f"s_mov_b32 s{s.sC}, 0")
        a(f"{lbl}_loop:")
        for j in range(3):
            for st in range(3):
                reads(st+1, (st+1)&1)
                a(f"s_waitcnt lgkmcnt({nr})")
                mm(st&1)
            a("s_waitcnt lgkmcnt(0)")
            if j == 2:
                a(f"s_cmp_eq_u32 s{s.sC}, 2\ns_cbranch_scc1 {lbl}_last")
            a("s_barrier")
            d = SLOT if j < 2 else -2*SLOT
            for r in s.vWR[:ntile]+s.vXR: a(f"v_add_u32 v{r}, {d & 0xffffffff}, v{r}")
            reads(0, 0)
            if j == 2: a(f"s_add_u32 s{s.sC}, s{s.sC}, 1")
            mm(1)
        a(f"s_branch {lbl}_loop")
        a(f"{lbl}_last:")
        a("s_barrier")
        mm(1)
        a("s_nop 15\ns_nop 3")

class ATT:
    def __init__(self, a, name):
        self.a=a; self.name=name
        s=self
        s.vLane, s.vT0, s.vT1, s.vT2, s.vT3 = 1,2,3,4,5
        s.vAK, s.vAR, s.vAV = 6,7,8
        s.vOffQ, s.vOffR, s.vL4 = 9,10,11
        s.vQ1=[12,16]; s.vQ2=[20,24]; s.vK1=[28,32]; s.vKR=[36,38]; s.vV=[40,48]; s.vP=56; s.vM=[64,65]
        s.vS=[68,84]; s.vO=[100,116]; s.vNM=[132,148]
        s.sW=24
        s.sHead,s.sQb,s.sQt,s.sT0,s.sT1,s.sT2,s.sT3 = 26,27,28,29,30,31,32
        s.sKVB,s.sFlag,s.sQM,s.sQR,s.sHalf,s.sP,s.sOM,s.sOR = 33,34,35,36,37,38,39,40
        s.sF0 = 42
        s.sPass = 44
        s.sKV = 45
    def ids(self):
        a=self.a; s=self
        a(f"""
        s_and_b32 s{s.sHead}, s2, 7
        s_lshl_b32 s{s.sHead}, s{s.sHead}, 2
        s_lshr_b32 s{s.sT0}, s2, 3
        s_and_b32 s{s.sT1}, s{s.sT0}, 3
        s_add_u32 s{s.sHead}, s{s.sHead}, s{s.sT1}
        s_lshr_b32 s{s.sQb}, s2, 5
        v_and_b32 v{s.vLane}, 63, v0
        v_lshlrev_b32 v{s.vOffQ}, 4, v{s.vLane}
        v_and_b32 v{s.vT1}, 31, v{s.vLane}
        v_lshrrev_b32 v{s.vT2}, 5, v{s.vLane}
        v_lshlrev_b32 v{s.vL4}, 2, v{s.vT1}
        s_mul_i32 s{s.sKVB}, s{s.sHead}, {8*CH}
        s_add_u32 s{s.sKVB}, s{s.sKVB}, {OFF_KVB}
        """)
    def compute_pre(self):
        a=self.a; s=self
        s.ids()
        a(f"""
        s_and_b32 s{s.sP}, s{s.sW}, 3
        s_lshr_b32 s{s.sHalf}, s{s.sW}, 2
        s_lshl_b32 s{s.sQt}, s{s.sQb}, 3
        s_lshl_b32 s{s.sT0}, s{s.sP}, 1
        s_add_u32 s{s.sQt}, s{s.sQt}, s{s.sT0}
        s_lshl_b32 s{s.sT0}, s{s.sHead}, 6
        s_add_u32 s{s.sT0}, s{s.sT0}, s{s.sQt}
        s_lshl_b32 s{s.sQM}, s{s.sT0}, 10
        s_lshl_b32 s{s.sQR}, s{s.sT0}, 7
        s_lshl_b32 s{s.sT1}, s{s.sHalf}, 10
        s_add_u32 s{s.sOM}, s{s.sQM}, s{s.sT1}
        s_lshl_b32 s{s.sT1}, s{s.sHalf}, 7
        s_add_u32 s{s.sOR}, s{s.sQR}, s{s.sT1}
        s_mul_i32 s{s.sT0}, s{s.sHalf}, {4*CH}
        v_add_u32 v{s.vAK}, s{s.sT0}, v{s.vOffQ}
        v_lshlrev_b32 v{s.vT0}, 4, v{s.vT1}
        v_mul_u32_u24 v{s.vAV}, 320, v{s.vT2}
        v_add_u32 v{s.vAV}, v{s.vAV}, v{s.vT0}
        v_add_u32 v{s.vAR}, 8192, v{s.vL4}
        v_add_u32 v{s.vAR}, s{s.sT0}, v{s.vAR}
        v_add_u32 v{s.vAV}, 9216, v{s.vAV}
        v_add_u32 v{s.vAV}, s{s.sT0}, v{s.vAV}
        v_mov_b32 v{s.vT0}, 0x10000000
        v_cmp_gt_u32 vcc, 19, v{s.vT1}
        s_nop 1
        v_cndmask_b32 v{s.vAV}, v{s.vT0}, v{s.vAV}, vcc
        v_cmp_gt_u32 vcc, 32, v{s.vLane}
        s_nop 1
        v_cndmask_b32 v{s.vAR}, v{s.vT0}, v{s.vAR}, vcc
        v_mov_b32 v{s.vT0}, {BIG}
        v_cndmask_b32 v{s.vOffR}, v{s.vT0}, v{s.vL4}, vcc
        """)
        for i in range(16): a(f"v_mov_b32 v{s.vO[0]+i}, 0\nv_mov_b32 v{s.vO[1]+i}, 0")
        for i in range(8): a(f"v_mov_b32 v{s.vP+i}, 0")
        for i in range(16): a(f"v_mov_b32 v{s.vV[0]+i}, 0")
    def compute_main(self):
        a=self.a; s=self; name=s.name
        vT0,vT1,vT2,vT3,vLane = s.vT0,s.vT1,s.vT2,s.vT3,s.vLane
        vQ1,vQ2,vM,vS,vO,vNM,vK1,vKR,vV,vP = s.vQ1,s.vQ2,s.vM,s.vS,s.vO,s.vNM,s.vK1,s.vKR,s.vV,s.vP
        sT0,sT1,sT2,sT3,sF0 = s.sT0,s.sT1,s.sT2,s.sT3,s.sF0
        a(f"""
        s_add_u32 s{sT0}, s{s.sQM}, {OFF_QBM}
        s_add_u32 s{sT1}, s{s.sQR}, {OFF_QBR}
        s_lshl_b32 s{sT2}, s{s.sHead}, 9
        s_add_u32 s{sT2}, s{sT2}, {OFF_KM}
        v_lshlrev_b32 v{vT3}, 3, v{vLane}
        buffer_load_dwordx2 {v(vM[0],2)}, v{vT3}, s[12:15], s{sT2} offen sc1
        buffer_load_dwordx4 {v(vQ1[0],4)}, v{s.vOffQ}, s[12:15], s{sT0} offen sc1
        buffer_load_dwordx4 {v(vQ1[1],4)}, v{s.vOffQ}, s[12:15], s{sT0} offen offset:1024 sc1
        buffer_load_dword v{vQ2[0]}, v{s.vL4}, s[12:15], s{sT1} offen sc1
        buffer_load_dword v{vQ2[1]}, v{s.vL4}, s[12:15], s{sT1} offen offset:128 sc1
        v_cmp_gt_u32 vcc, 32, v{vLane}
        s_waitcnt vmcnt(0)
        v_cndmask_b32 v{vQ2[0]}, 0, v{vQ2[0]}, vcc
        v_cndmask_b32 v{vQ2[1]}, 0, v{vQ2[1]}, vcc
        """)
        for i,k in enumerate((1,2,4,8)):
            a(f"""
            v_max_f32_dpp v{vM[0]}, v{vM[0]}, v{vM[0]} row_ror:{k} row_mask:0xf bank_mask:0xf
            v_max_f32_dpp v{vM[1]}, v{vM[1]}, v{vM[1]} row_ror:{k} row_mask:0xf bank_mask:0xf
            v_dot2_f32_bf16 v{vT0}, v{vQ1[0]+i}, v{vQ1[0]+i}, {('0' if i==0 else 'v%d'%vT0)}
            v_dot2_f32_bf16 v{vT1}, v{vQ1[1]+i}, v{vQ1[1]+i}, {('0' if i==0 else 'v%d'%vT1)}
            """)
        a(f"""
        v_dot2_f32_bf16 v{vT0}, v{vQ2[0]}, v{vQ2[0]}, v{vT0}
        v_dot2_f32_bf16 v{vT1}, v{vQ2[1]}, v{vQ2[1]}, v{vT1}
        v_readlane_b32 s{sT0}, v{vM[0]}, 0
        v_readlane_b32 s{sT1}, v{vM[0]}, 16
        v_readlane_b32 s{sT2}, v{vM[0]}, 32
        v_readlane_b32 s{sT3}, v{vM[0]}, 48
        s_nop 3
        s_max_u32 s{sT0}, s{sT0}, s{sT1}
        s_max_u32 s{sT2}, s{sT2}, s{sT3}
        s_max_u32 s{sF0}, s{sT0}, s{sT2}
        v_readlane_b32 s{sT0}, v{vM[1]}, 0
        v_readlane_b32 s{sT1}, v{vM[1]}, 16
        v_readlane_b32 s{sT2}, v{vM[1]}, 32
        v_readlane_b32 s{sT3}, v{vM[1]}, 48
        s_nop 3
        s_max_u32 s{sT0}, s{sT0}, s{sT1}
        s_max_u32 s{sT2}, s{sT2}, s{sT3}
        s_max_u32 s{sT1}, s{sT0}, s{sT2}
        v_mov_b32 v{vQ2[0]+1}, 0
        v_mov_b32 v{vQ2[0]+2}, 0
        v_mov_b32 v{vQ2[0]+3}, v{vQ2[0]}
        v_mov_b32 v{vQ2[1]+1}, 0
        v_mov_b32 v{vQ2[1]+2}, 0
        v_mov_b32 v{vQ2[1]+3}, v{vQ2[1]}
        v_mov_b32 v{vT2}, v{vT0}
        v_mov_b32 v{vT3}, v{vT1}
        v_mov_b32 v{vM[1]}, s{sF0}
        v_add_f32 v{vM[1]}, s{sT1}, v{vM[1]}
        v_permlane32_swap_b32 v{vT0}, v{vT2}
        v_permlane32_swap_b32 v{vT1}, v{vT3}
        s_nop 1
        v_add_f32 v{vT0}, v{vT0}, v{vT2}
        v_add_f32 v{vT1}, v{vT1}, v{vT3}
        v_mul_f32 v{vT0}, v{vT0}, v{vM[1]}
        v_mul_f32 v{vT1}, v{vT1}, v{vM[1]}
        v_sqrt_f32 v{vT0}, v{vT0}
        v_sqrt_f32 v{vT1}, v{vT1}
        s_nop 0
        v_mul_f32 v{vM[0]}, 0x3f828f5c, v{vT0}
        v_mul_f32 v{vM[1]}, 0x3f828f5c, v{vT1}
        v_add_f32 v{vM[0]}, 0x3a83126f, v{vM[0]}
        v_add_f32 v{vM[1]}, 0x3a83126f, v{vM[1]}
        v_max_f32 v{vT0}, v{vM[0]}, v{vM[1]}
        v_mov_b32 v{vT1}, 0x42400000
        v_cmp_nle_f32 vcc, v{vT0}, v{vT1}
        v_cmp_u_f32 s[{sF0}:{sF0+1}], v{vM[0]}, v{vM[1]}
        s_nop 3
        s_or_b64 vcc, vcc, s[{sF0}:{sF0+1}]
        s_cmp_lg_u64 vcc, 0
        s_cselect_b32 s{s.sFlag}, 1, 0
        v_mov_b32 v{vT2}, s{s.sFlag}
        s_lshl_b32 s{sT0}, s{s.sW}, 2
        s_add_u32 s{sT0}, s{sT0}, {FLAGS}
        v_mov_b32 v{vT3}, s{sT0}
        ds_write_b32 v{vT3}, v{vT2}
        """)
        def set_negm():
            for q in range(2):
                a(f"v_sub_f32 v{vNM[q]}, 0, v{vM[q]}")
                for i in range(1,16): a(f"v_mov_b32 v{vNM[q]+i}, v{vNM[q]}")
        set_negm()
        a("s_waitcnt lgkmcnt(0)\ns_barrier")
        if s.stamps: a("s_memtime s[52:53]")
        s.read_flag()
        a(f"s_cbranch_scc0 {name}_fb")
        a(f"{name}_fast:")
        def koff(t): return t*1024 if t < 8 else CH + (t-8)*1024
        def roff(t): return t*128 if t < 8 else CH + (t-8)*128
        def voff(t,j): return (t*2+j)*640 if t < 8 else CH + ((t-8)*2+j)*640
        def rdK(t):
            a.ds(f"ds_read_b128 {v(vK1[t&1],4)}, v{s.vAK} offset:{koff(t)}", ("k",t))
            if t%2==0:
                if t < 8:
                    a.ds(f"ds_read2_b32 {v(vKR[(t//2)&1],2)}, v{s.vAR} offset0:{roff(t)//4} offset1:{roff(t)//4+32}", ("k",t))
                else:
                    a(f"v_add_u32 v{vT0}, {CH}, v{s.vAR}")
                    a.ds(f"ds_read2_b32 {v(vKR[(t//2)&1],2)}, v{vT0} offset0:0 offset1:32", ("k",t))
        def rdV(t):
            a.ds(f"ds_read_b128 {v(vV[t&1],4)}, v{s.vAV} offset:{voff(t,0)}", ("v",t))
            a.ds(f"ds_read_b128 {v(vV[t&1]+4,4)}, v{s.vAV} offset:{voff(t,1)}", ("v",t))
        def S1(u):
            t,q = u//2,u%2
            a(f"v_mfma_f32_32x32x16_bf16 {v(vS[u&1],16)}, {v(vK1[t&1],4)}, {v(vQ1[q],4)}, {v(vNM[q],16)}")
        def S2(u):
            t,q = u//2,u%2
            a(f"v_mfma_f32_32x32x8_bf16 {v(vS[u&1],16)}, {v(vKR[(t//2)&1],2)}, {v(vQ2[q]+2*(t&1),2)}, {v(vS[u&1],16)}")
        def PV(u,j):
            t,q = (u//2),u%2
            a(f"v_mfma_f32_32x32x16_bf16 {v(vO[q],16)}, {v(vV[t&1]+4*j,4)}, {v(vP+4*j,4)}, {v(vO[q],16)}")
        a.lg=[]
        rdK(0); rdV(0); rdK(1)
        a.wait_lg(("k",0))
        S1(0); S2(0)
        a(f"s_mov_b32 s{s.sPass}, 0\ns_nop 7\ns_nop 3")
        a(f"{name}_loop:")
        a.lg=[("v",0),("v",0),("k",1)]
        for u in range(16):
            t,q = u//2,u%2
            cur = vS[u&1]
            E = lambda i: a(f"v_exp_f32 v{cur+i}, v{cur+i}")
            C = lambda p: a(f"v_cvt_pk_bf16_f32 v{vP+p}, v{cur+2*p}, v{cur+2*p+1}")
            def G(g):
                for i in range(4*g,4*g+4): E(i)
                C(2*g); C(2*g+1)
            if q == 0 and t == 6:
                a("s_barrier")
            a.wait_lg(("k", (u+1)//2))
            S1(u+1)
            G(0)
            PV(u-1 if u>0 else 15, 1)
            if q == 0: rdV(t+1)
            else: rdK(t+2)
            G(1)
            S2(u+1)
            G(2)
            a.wait_lg(("v", t))
            PV(u, 0)
            G(3)
        assert a.lg == [("v",8),("v",8),("k",9)], a.lg
        a(f"""
        v_add_u32 v{s.vAK}, {CH}, v{s.vAK}
        v_add_u32 v{s.vAR}, {CH}, v{s.vAR}
        v_add_u32 v{s.vAV}, {CH}, v{s.vAV}
        s_add_u32 s{s.sPass}, s{s.sPass}, 1
        s_cmp_lt_u32 s{s.sPass}, 4
        s_cbranch_scc1 {name}_loop
        """)
        PV(15, 1)
        if s.stamps: a("s_memtime s[54:55]")
        a.lg=[]
        a("s_waitcnt lgkmcnt(0)\ns_nop 7\ns_nop 3\ns_barrier")
        a(f"s_mul_i32 s{sT0}, s{s.sW}, 3072\nv_add_u32 v{vT0}, s{sT0}, v{s.vOffQ}")
        a(f"s_cmp_eq_u32 s{s.sHalf}, 0\ns_cbranch_scc1 {name}_h0")
        for qd in range(3): a(f"ds_write_b128 v{vT0}, {v(vO[0]+4*qd,4)} offset:{1024*qd}")
        a("s_waitcnt lgkmcnt(0)")
        for i in range(12): a(f"v_mov_b32 v{vO[0]+i}, v{vO[1]+i}")
        a(f"s_branch {name}_h1\n{name}_h0:")
        for qd in range(3): a(f"ds_write_b128 v{vT0}, {v(vO[1]+4*qd,4)} offset:{1024*qd}")
        a(f"{name}_h1:")
        a("s_waitcnt lgkmcnt(0)\ns_barrier")
        a(f"s_xor_b32 s{sT1}, s{s.sW}, 4\ns_mul_i32 s{sT1}, s{sT1}, 3072\nv_add_u32 v{vT1}, s{sT1}, v{s.vOffQ}")
        for qd in range(3): a(f"ds_read_b128 {v(vS[0]+4*qd,4)}, v{vT1} offset:{1024*qd}")
        a("s_waitcnt lgkmcnt(0)")
        for i in range(12): a(f"v_add_f32 v{vO[0]+i}, v{vO[0]+i}, v{vS[0]+i}")
        s.norm_store(vO[0], OFF_OBM, OFF_OBR, False, s.sOM, s.sOR)
        a("s_waitcnt vmcnt(0)\ns_barrier")
    def read_flag(self):
        a=self.a; s=self
        b = s.vS[0]
        a(f"v_mov_b32 v{s.vT3}, {FLAGS}")
        a(f"ds_read_b128 {v(b,4)}, v{s.vT3}\nds_read_b128 {v(b+4,4)}, v{s.vT3} offset:16\ns_waitcnt lgkmcnt(0)")
        for i in range(1,8): a(f"v_or_b32 v{b}, v{b}, v{b+i}")
        a(f"s_nop 0\nv_readfirstlane_b32 s{s.sFlag}, v{b}\ns_nop 3\ns_cmp_eq_u32 s{s.sFlag}, 0")
    def compute_fallback(self):
        a=self.a; s=self; name=s.name
        vT0,vT1,vM,vS,vK1,vKR,vQ1,vQ2,vNM = s.vT0,s.vT1,s.vM,s.vS,s.vK1,s.vKR,s.vQ1,s.vQ2,s.vNM
        a(f"{name}_fb:")
        a("s_barrier")
        a(f"""
        v_mov_b32 v{vM[0]}, 0xff7fffff
        v_mov_b32 v{vM[1]}, 0xff7fffff
        v_mov_b32 v{vT0}, v{s.vOffQ}
        v_add_u32 v{vT1}, 8192, v{s.vL4}
        s_mov_b32 s{s.sT0}, 0
        {name}_fb_chunk:
        """)
        for t in range(8):
            a(f"ds_read_b128 {v(vK1[0],4)}, v{vT0} offset:{t*1024}")
            if t%2==0: a(f"ds_read2_b32 {v(vKR[0],2)}, v{vT1} offset0:{t*32} offset1:{t*32+32}")
            a("s_waitcnt lgkmcnt(0)")
            for q in range(2):
                a(f"v_mfma_f32_32x32x16_bf16 {v(vS[q],16)}, {v(vK1[0],4)}, {v(vQ1[q],4)}, 0")
                a(f"v_mfma_f32_32x32x8_bf16 {v(vS[q],16)}, {v(vKR[0],2)}, {v(vQ2[q]+2*(t&1),2)}, {v(vS[q],16)}")
            a("s_nop 15\ns_nop 3")
            for q in range(2):
                for j in range(0,16,2): a(f"v_max3_f32 v{vM[q]}, v{vM[q]}, v{vS[q]+j}, v{vS[q]+j+1}")
        a(f"""
        v_add_u32 v{vT0}, {CH}, v{vT0}
        v_add_u32 v{vT1}, {CH}, v{vT1}
        s_add_u32 s{s.sT0}, s{s.sT0}, 1
        s_cmp_lt_u32 s{s.sT0}, 8
        s_cbranch_scc1 {name}_fb_chunk
        v_mov_b32 v{vT0}, v{vM[0]}
        v_mov_b32 v{vT1}, v{vM[1]}
        s_nop 1
        v_permlane32_swap_b32 v{vM[0]}, v{vT0}
        v_permlane32_swap_b32 v{vM[1]}, v{vT1}
        s_nop 1
        v_max_f32 v{vM[0]}, v{vM[0]}, v{vT0}
        v_max_f32 v{vM[1]}, v{vM[1]}, v{vT1}
        """)
        for q in range(2):
            a(f"v_sub_f32 v{vNM[q]}, 0, v{vM[q]}")
            for i in range(1,16): a(f"v_mov_b32 v{vNM[q]+i}, v{vNM[q]}")
        a(f"s_branch {name}_fast")
    def norm_store(self, acc, offM, offR, eps, sM, sR):
        a=self.a; s=self
        vT0,vT1,vP = s.vT0,s.vT1,s.vP
        a(f"v_mov_b32 v{vT0}, v{acc+10}\nv_mov_b32 v{vT1}, v{acc+10}\ns_nop 1")
        a(f"v_permlane32_swap_b32 v{vT0}, v{vT1}\ns_nop 1")
        if eps: a(f"v_add_f32 v{vT0}, 0x358637bd, v{vT0}")
        a(f"v_rcp_f32 v{vT0}, v{vT0}\ns_nop 0")
        for i in range(10): a(f"v_mul_f32 v{acc+i}, v{acc+i}, v{vT0}")
        for p in range(5): a(f"v_cvt_pk_bf16_f32 v{acc+p}, v{acc+2*p}, v{acc+2*p+1}")
        a(f"s_add_u32 s{s.sT0}, s{sM}, {offM}\ns_add_u32 s{s.sT1}, s{sR}, {offR}")
        a(f"buffer_store_dwordx4 {v(acc,4)}, v{s.vOffQ}, s[12:15], s{s.sT0} offen sc1")
        a(f"buffer_store_dword v{acc+4}, v{s.vOffR}, s[12:15], s{s.sT1} offen sc1")
    def wait_flags(self, branch, tag):
        a=self.a; s=self; L = f"{s.name}_wf{tag}"
        qi, ki, vi = ((0,32,0) if branch==0 else (64,32,64))
        kv8 = 0 if branch==0 else 8
        a(f"""
        s_add_u32 s{s.sT0}, s{s.sHead}, {qi}
        s_mul_i32 s{s.sT0}, s{s.sT0}, 5462
        s_lshr_b32 s{s.sT0}, s{s.sT0}, 16
        s_add_u32 s{s.sT1}, s{s.sHead}, {ki}
        s_mul_i32 s{s.sT1}, s{s.sT1}, 5462
        s_lshr_b32 s{s.sT1}, s{s.sT1}, 16
        s_add_u32 s{s.sT1}, s{s.sT1}, {kv8}
        s_add_u32 s{s.sT2}, s{s.sHead}, {vi}
        s_mul_i32 s{s.sT2}, s{s.sT2}, 5462
        s_lshr_b32 s{s.sT2}, s{s.sT2}, 16
        s_add_u32 s{s.sT2}, s{s.sT2}, 8
        v_lshrrev_b32 v{s.vT0}, 4, v{s.vLane}
        v_mov_b32 v{s.vT1}, s{s.sT0}
        v_mov_b32 v{s.vT2}, s{s.sT1}
        v_cmp_eq_u32 vcc, 1, v{s.vT0}
        s_nop 1
        v_cndmask_b32 v{s.vT1}, v{s.vT1}, v{s.vT2}, vcc
        v_mov_b32 v{s.vT2}, s{s.sT2}
        v_cmp_le_u32 vcc, 2, v{s.vT0}
        s_nop 1
        v_cndmask_b32 v{s.vT1}, v{s.vT1}, v{s.vT2}, vcc
        v_lshlrev_b32 v{s.vT1}, 7, v{s.vT1}
        v_and_b32 v{s.vT2}, 15, v{s.vLane}
        v_lshlrev_b32 v{s.vT2}, 2, v{s.vT2}
        v_add_u32 v{s.vT1}, v{s.vT1}, v{s.vT2}
        s_mov_b32 s{s.sT3}, 0
        s_mov_b32 s{s.sT0}, {OFF_FL}
        {L}:
        buffer_load_dword v{s.vT2}, v{s.vT1}, s[12:15], s{s.sT0} offen sc1
        s_waitcnt vmcnt(0)
        v_cmp_ne_u32 vcc, s47, v{s.vT2}
        s_nop 3
        s_cmp_eq_u64 vcc, 0
        s_cbranch_scc1 {L}_ok
        s_add_u32 s{s.sT3}, s{s.sT3}, 1
        s_cmp_lt_u32 s{s.sT3}, 0x40000
        s_cbranch_scc0 {L}_ok
        s_sleep 4
        s_branch {L}
        {L}_ok:
        """)
    def kv_dma(self, step):
        a=self.a; s=self
        for i in range(10):
            lo, hi = 4*i, 4*i+3
            if lo >= 38: break
            L=None
            if hi >= 38:
                L = a.uid("kd"); a(f"s_cmp_ge_u32 s{s.sW}, {38-lo}\ns_cbranch_scc1 {L}")
            base = lo*1024 + step*CH
            a(f"s_lshl_b32 s{s.sT0}, s{s.sW}, 10")
            if hi < 19: a(f"s_add_u32 s{s.sT0}, s{s.sT0}, {base}")
            elif lo >= 19: a(f"s_add_u32 s{s.sT0}, s{s.sT0}, {base + 4*CH - 19*1024}")
            else:
                a(f"s_cmp_ge_u32 s{s.sW}, {19-lo}\ns_cselect_b32 s{s.sT1}, {4*CH-19*1024}, 0\ns_add_u32 s{s.sT0}, s{s.sT0}, s{s.sT1}\ns_add_u32 s{s.sT0}, s{s.sT0}, {base}")
            a(f"s_mov_b32 m0, s{s.sT0}\ns_add_u32 s{s.sT0}, s{s.sT0}, s{s.sKVB}")
            a(f"buffer_load_dwordx4 v{s.vOffQ}, s[12:15], s{s.sT0} offen sc1 lds")
            if L: a(f"{L}:")
    def service_main(self):
        a=self.a; s=self; name=s.name
        vT0,vT1,vT2,vT3,vLane = s.vT0,s.vT1,s.vT2,s.vT3,s.vLane
        vKV = 68; vPK = 100
        vOffKV = 6
        a(f"""
        v_and_b32 v{vT1}, 31, v{vLane}
        v_lshrrev_b32 v{vT2}, 5, v{vLane}
        v_lshlrev_b32 v{vT0}, 4, v{vT1}
        v_mul_u32_u24 v{vOffKV}, 320, v{vT2}
        v_add_u32 v{vOffKV}, v{vOffKV}, v{vT0}
        v_cmp_gt_u32 vcc, 19, v{vT1}
        v_mov_b32 v{vT0}, {BIG}
        s_nop 0
        v_cndmask_b32 v{vOffKV}, v{vT0}, v{vOffKV}, vcc
        v_cmp_gt_u32 vcc, 32, v{vLane}
        s_nop 1
        v_cndmask_b32 v{s.vOffR}, v{vT0}, v{s.vL4}, vcc
        s_mul_i32 s{s.sKV}, s{s.sHead}, {128*640}
        s_mul_i32 s{s.sT0}, s{s.sW}, {32*640}
        s_add_u32 s{s.sKV}, s{s.sKV}, s{s.sT0}
        """)
        s.kv_dma(0)
        a("s_waitcnt vmcnt(0)\ns_barrier")
        s.kv_dma(1)
        s.read_flag()
        a(f"s_cbranch_scc0 {name}_sfb")
        a(f"{name}_sfast:")
        def kv_loads(g0, n):
            if "nokv" in s.dbg: return
            for g in range(n):
                a(f"s_add_u32 s{s.sT0}, s{s.sKV}, {OFF_PK + (g0+g)*640}")
                a(f"buffer_load_dwordx4 {v(vPK+8*g,4)}, v{vOffKV}, s[12:15], s{s.sT0} offen sc1")
                a(f"s_add_u32 s{s.sT0}, s{s.sKV}, {OFF_VA + (g0+g)*640}")
                a(f"buffer_load_dwordx4 {v(vPK+8*g+4,4)}, v{vOffKV}, s[12:15], s{s.sT0} offen sc1")
        def kv_mm(n, first):
            if "nokv" in s.dbg: return
            for g in range(n):
                C = "0" if (first and g==0) else v(vKV,16)
                a(f"v_mfma_f32_32x32x16_bf16 {v(vKV,16)}, {v(vPK+8*g,4)}, {v(vPK+8*g+4,4)}, {C}")
        s.wait_flags(1, "a")
        kv_loads(0, 8)
        s.kv_dma(2)
        a("s_waitcnt vmcnt(9)")
        kv_mm(8, True)
        a("s_barrier")
        kv_loads(8, 8)
        s.kv_dma(3)
        a("s_waitcnt vmcnt(9)")
        kv_mm(8, False)
        kv_loads(16, 8)
        a("s_waitcnt vmcnt(0)")
        kv_mm(8, False)
        a("s_barrier")
        kv_loads(24, 8)
        a("s_waitcnt vmcnt(0)")
        kv_mm(8, False)
        a("s_nop 15\ns_nop 3")
        a(f"s_mul_i32 s{s.sT0}, s{s.sW}, 3072\nv_add_u32 v{vT0}, s{s.sT0}, v{s.vOffQ}")
        for qd in range(3): a(f"ds_write_b128 v{vT0}, {v(vKV+4*qd,4)} offset:{1024*qd}")
        a(f"""
        s_lshl_b32 s{s.sQt}, s{s.sQb}, 3
        s_lshl_b32 s{s.sT0}, s{s.sW}, 1
        s_add_u32 s{s.sQt}, s{s.sQt}, s{s.sT0}
        s_lshl_b32 s{s.sT0}, s{s.sHead}, 6
        s_add_u32 s{s.sT0}, s{s.sT0}, s{s.sQt}
        s_lshl_b32 s{s.sOM}, s{s.sT0}, 10
        s_lshl_b32 s{s.sOR}, s{s.sT0}, 7
        s_add_u32 s{s.sT0}, s{s.sOM}, {OFF_PQM}
        s_add_u32 s{s.sT1}, s{s.sOR}, {OFF_PQR}
        buffer_load_dwordx4 v[12:15], v{s.vOffQ}, s[12:15], s{s.sT0} offen sc1
        buffer_load_dwordx4 v[16:19], v{s.vOffQ}, s[12:15], s{s.sT0} offen offset:1024 sc1
        buffer_load_dword v20, v{s.vL4}, s[12:15], s{s.sT1} offen sc1
        buffer_load_dword v22, v{s.vL4}, s[12:15], s{s.sT1} offen offset:128 sc1
        s_waitcnt vmcnt(0) lgkmcnt(0)
        s_barrier
        """)
        for qd in range(3):
            for w in range(4): a(f"ds_read_b128 {v(vPK+16*qd+4*w,4)}, v{s.vOffQ} offset:{w*3072+qd*1024}")
        a("s_waitcnt lgkmcnt(0)")
        for qd in range(3):
            b = vPK+16*qd
            for i in range(4):
                a(f"v_add_f32 v{b+i}, v{b+i}, v{b+4+i}")
                a(f"v_add_f32 v{b+8+i}, v{b+8+i}, v{b+12+i}")
            for i in range(4): a(f"v_add_f32 v{vKV+4*qd+i}, v{b+i}, v{b+8+i}")
        for p in range(4): a(f"v_cvt_pk_bf16_f32 v{24+p}, v{vKV+2*p}, v{vKV+2*p+1}")
        a(f"""
        v_cvt_pk_bf16_f32 v{vT0}, v{vKV+8}, v{vKV+9}
        v_cmp_gt_u32 vcc, 32, v{vLane}
        v_mov_b32 v29, 0
        v_mov_b32 v21, 0
        v_mov_b32 v23, 0
        v_cndmask_b32 v28, 0, v{vT0}, vcc
        v_cndmask_b32 v20, 0, v20, vcc
        v_cndmask_b32 v22, 0, v22, vcc
        s_nop 1
        v_mfma_f32_32x32x16_bf16 v[100:115], v[24:27], v[12:15], 0
        v_mfma_f32_32x32x16_bf16 v[116:131], v[24:27], v[16:19], 0
        v_mfma_f32_32x32x8_bf16 v[100:115], v[28:29], v[20:21], v[100:115]
        v_mfma_f32_32x32x8_bf16 v[116:131], v[28:29], v[22:23], v[116:131]
        s_nop 15
        s_nop 3
        """)
        s.norm_store(100, OFF_OAM, OFF_OAR, True, s.sOM, s.sOR)
        a(f"s_add_u32 s{s.sOM}, s{s.sOM}, 1024\ns_add_u32 s{s.sOR}, s{s.sOR}, 128")
        s.norm_store(116, OFF_OAM, OFF_OAR, True, s.sOM, s.sOR)
        a("s_waitcnt vmcnt(0)")
        a("s_barrier")
        a("s_barrier")
        a("s_barrier")
        a("s_barrier")
    def service_fallback(self):
        a=self.a; s=self; name=s.name
        a(f"{name}_sfb:")
        s.kv_dma(2); s.kv_dma(3)
        a("s_waitcnt vmcnt(0)\ns_barrier")
        a(f"s_branch {name}_sfast")
def gen_f1(name="f1_kernel", stamps=False, dbg=""):
    a = Asm()
    q = QKVF(a, name, "sc1")
    t = ATT(a, name); t.stamps = stamps; t.dbg = dbg
    def stamp(i):
        if stamps: a(f"s_memtime s[{50+2*i}:{51+2*i}]")
    a(f"""
    s_cmp_ge_u32 s2, 256
    s_cbranch_scc1 {name}_end
    s_load_dwordx2 s[8:9], s[0:1], 0
    s_load_dwordx2 s[16:17], s[0:1], 8
    s_load_dwordx2 s[18:19], s[0:1], 32
    s_load_dwordx2 s[4:5], s[0:1], 48
    s_load_dwordx2 s[92:93], s[0:1], 64
    s_load_dwordx2 s[12:13], s[0:1], 72
    s_memtime s[50:51]
    s_memrealtime s[66:67]
    s_mov_b32 s10, {S*D*2}
    s_mov_b32 s11, 0x00020000
    s_mov_b32 s14, {WS_END}
    s_mov_b32 s15, 0x00020000
    s_mov_b32 s6, 1152
    s_mov_b32 s7, 0x00020000
    s_mov_b32 s94, 256
    s_mov_b32 s95, 0x00020000
    """)
    q.setup()
    a(f"s_cmp_lt_u32 s{q.sW}, 8\ns_cbranch_scc1 {name}_comp")
    a("s_setprio 1")
    a(f"s_sub_u32 s{q.sW}, s{q.sW}, 8")
    q.loader_x_setup()
    a("s_waitcnt lgkmcnt(0)")
    a(f"""
    s_cmp_lg_u32 s2, 0
    s_cbranch_scc1 {name}_nonce1
    s_cmp_lg_u32 s{q.sW}, 0
    s_cbranch_scc1 {name}_nonce1
    s_memrealtime s[80:81]
    s_waitcnt lgkmcnt(0)
    s_or_b32 s80, s80, 1
    v_mov_b32 v2, s80
    v_mov_b32 v3, 0
    s_mov_b64 exec, 1
    buffer_store_dword v2, v3, s[92:95], 0 offen sc1
    s_mov_b64 exec, -1
    {name}_nonce1:
    """)
    q.loader4(name+"_ld", name+"_svc2")
    a(f"{name}_svc2:")
    a(f"s_mov_b32 s46, s{q.sJt}\ns_mov_b32 s48, s{q.sR}")
    t.ids()
    a(f"""
    v_mov_b32 v3, 0
    s_mov_b32 s30, 0
    {name}_npoll:
    buffer_load_dword v2, v3, s[92:95], 0 offen sc1
    s_waitcnt vmcnt(0)
    v_readfirstlane_b32 s47, v2
    s_nop 3
    s_cmp_lg_u32 s47, 0
    s_cbranch_scc1 {name}_ndone
    s_add_u32 s30, s30, 1
    s_cmp_lt_u32 s30, 0x40000
    s_cbranch_scc0 {name}_ndone
    s_sleep 8
    s_branch {name}_npoll
    {name}_ndone:
    """)
    a("s_barrier")
    a(f"""
    s_cmp_lg_u32 s{q.sW}, 0
    s_cbranch_scc1 {name}_nopoll
    v_mov_b32 v2, s47
    s_lshl_b32 s29, s46, 7
    s_lshl_b32 s30, s48, 2
    s_add_u32 s29, s29, s30
    s_add_u32 s29, s29, {OFF_FL}
    v_mov_b32 v3, 0
    s_mov_b64 exec, 1
    buffer_store_dword v2, v3, s[12:15], s29 offen sc1
    s_mov_b64 exec, -1
    """)
    t.wait_flags(0, "b")
    a(f"{name}_nopoll:\ns_barrier")
    stamp(3)
    t.service_main()
    a("s_endpgm")
    t.service_fallback()
    a(f"{name}_comp:\ns_waitcnt lgkmcnt(0)")
    q.read_addrs()
    for i in range(64): a(f"v_mov_b32 v{q.vD+i}, 0")
    a(f"""
    s_lshl_b32 s{q.sT0}, s{q.sIsV}, 1
    s_add_u32 s{q.sT0}, s{q.sT0}, s{q.sCh}
    s_cmp_eq_u32 s{q.sT0}, 1
    s_cbranch_scc1 {name}_v01
    s_cmp_eq_u32 s{q.sT0}, 2
    s_cbranch_scc1 {name}_v10
    s_cmp_eq_u32 s{q.sT0}, 3
    s_cbranch_scc1 {name}_v11
    """)
    for (isv,ch) in ((0,0),(0,1),(1,0),(1,1)):
        if (isv,ch) != (0,0): a(f"{name}_v{isv}{ch}:")
        q.gemm3(isv, ch, f"{name}_g{isv}{ch}")
        stamp(1)
        (q.v_epilogue if isv else q.q_epilogue)(f"{name}_e{isv}{ch}", ch)
        if (isv,ch) != (1,1): a(f"s_branch {name}_c2")
    a(f"{name}_c2:")
    stamp(2)
    t.compute_pre()
    a("s_waitcnt vmcnt(0)")
    stamp(6)
    a("s_barrier")
    stamp(4)
    a("s_barrier")
    stamp(3)
    t.compute_main()
    if stamps:
        stamp(5)
        a("s_memrealtime s[68:69]\ns_waitcnt lgkmcnt(0)")
        a("s_lshl_b32 s28, s2, 3\ns_add_u32 s28, s28, s24\ns_lshl_b32 s28, s28, 5\ns_add_u32 s28, s28, 0x2000000\ns_mov_b32 s14, 0x4000000")
        for i in (1,2,3,4,5,6): a(f"s_sub_u32 s{50+2*i}, s{50+2*i}, s50")
        a("v_mov_b32 v2, s66\nv_mov_b32 v3, s52\nv_mov_b32 v4, s54\nv_mov_b32 v5, s56\nv_mov_b32 v6, s60\nv_mov_b32 v7, s68\nv_mov_b32 v8, s62\nv_mov_b32 v9, s58\nv_mov_b32 v10, 0")
        a("buffer_store_dwordx4 v[2:5], v10, s[12:15], s28 offen\nbuffer_store_dwordx4 v[6:9], v10, s[12:15], s28 offen offset:16")
    a("s_endpgm")
    t.compute_fallback()
    a(f"{name}_end:\ns_endpgm")
    return kernel_head(name) + a.text() + kernel_desc(name, 168, sgpr=100)
```

```python
import numpy as np
S=2048; D=576; H=32; DH=18
def bf16(x):
    x = np.ascontiguousarray(x, np.float32)
    u = x.view(np.uint32)
    return ((u + 0x7fff + ((u>>16)&1))>>16).astype(np.uint16)
def unbf16(u):
    return (np.ascontiguousarray(u,np.uint16).astype(np.uint32)<<16).view(np.float32)
def rb(x): return unbf16(bf16(x))
CH = 19456
OFF_QBM = 0
OFF_QBR = OFF_QBM + 32*64*1024
OFF_KVB = OFF_QBR + 32*2048*4
OFF_PQM = OFF_KVB + 32*8*CH
OFF_PQR = OFF_PQM + 32*64*1024
OFF_PK  = OFF_PQR + 32*2048*4
OFF_VA  = OFF_PK + 32*128*640 + 1024
OFF_KM  = OFF_VA + 32*128*640 + 1024
OFF_G   = OFF_KM + 32*64*2*4
OFF_OAM = OFF_G + 2048*4
OFF_OAR = OFF_OAM + 32*64*1024
OFF_OBM = OFF_OAR + 32*2048*4
OFF_OBR = OFF_OBM + 32*64*1024
OFF_FL  = (OFF_OBR + 32*2048*4 + 4095)//4096*4096
FL1_STRIDE = 128
OFF_FL2B = OFF_FL + 16*FL1_STRIDE
OFF_FL2A = OFF_FL2B + 8*128
WS_END  = OFF_FL2A + 8*128 + 1024
def md(h): return list(range(16)) if h%2==0 else list(range(2,18))
def rd(h): return [16,17] if h%2==0 else [0,1]
def mi(hf,j): return 4*hf+j if j<4 else 8+4*hf+(j-4)
MI = np.array([[mi(hf,j) for j in range(8)] for hf in range(2)])
def rho_dims(h): return md(h)+rd(h)
QSCALE = np.float32(np.log2(np.e)/np.sqrt(18.0))
def qtype_main(t):
    out = np.zeros((H,64,64,8),np.uint16)
    tb = bf16(t)
    for h in range(H):
        m = np.array(md(h))
        for hf in range(2):
            out[h,:,hf*32:(hf+1)*32,:] = tb[:,h,:][:, m[MI[hf]]].reshape(64,32,8)
    return out
def qtype_rem(t):
    out = np.zeros((H,S,2),np.uint16)
    tb = bf16(t)
    for h in range(H):
        out[h] = tb[:,h,:][:, rd(h)]
    return out
def vtype(t, ones):
    out = np.zeros((H,128,2,20,8),np.uint16)
    tb = bf16(t)
    for h in range(H):
        rr = rho_dims(h)
        tt = tb[:,h,:][:, rr]
        tt = tt.reshape(128,16,18)
        for hf in range(2):
            out[h,:,hf,:18,:] = tt[:, MI[hf], :].transpose(0,2,1)
        if ones: out[h,:,:,18,:] = 0x3f80
    return out
def phi(t):
    return np.where(t>0, t+1, np.exp(np.minimum(t,0))) + 1e-6
def compute_qkv(x, w):
    y = x @ w
    y = y.reshape(S,3,H,DH)
    return y[:,0], y[:,1], y[:,2]
def build_ws(x, wA, wB, gw):
    ws = np.zeros(WS_END, np.uint8)
    def put(off, arr):
        b = np.ascontiguousarray(arr).view(np.uint8).ravel(); ws[off:off+b.size] = b
    qB,kB,vB = compute_qkv(x,wB); qA,kA,vA = compute_qkv(x,wA)
    put(OFF_QBM, qtype_main(qB*QSCALE)); put(OFF_QBR, qtype_rem(qB*QSCALE))
    km = qtype_main(kB); kr = qtype_rem(kB); vv = vtype(vB, True)
    kvb = np.zeros((H,8,CH),np.uint8)
    for h in range(H):
        for c in range(8):
            kvb[h,c,:8192] = km[h,8*c:8*c+8].view(np.uint8).ravel()
            kvb[h,c,8192:9216] = kr[h,256*c:256*(c+1)].view(np.uint8).ravel()
            kvb[h,c,9216:] = vv[h,16*c:16*c+16].view(np.uint8).ravel()
    put(OFF_KVB, kvb)
    pq = phi(qA); pk = phi(kA)
    put(OFF_PQM, qtype_main(pq)); put(OFF_PQR, qtype_rem(pq))
    put(OFF_PK, vtype(pk, False)); put(OFF_VA, vtype(vA, True))
    kmx = np.zeros((H,64,2),np.float32)
    for h in range(H):
        kk = kB[:,h,:]
        kmx[h,:,0] = (kk[:,md(h)]**2).sum(1).reshape(64,32).max(1)
        kmx[h,:,1] = (kk[:,rd(h)]**2).sum(1).reshape(64,32).max(1)
    put(OFF_KM, kmx)
    z = x @ gw
    g = 1/(1+np.exp(-z))
    put(OFF_G, g.astype(np.float32))
    return ws, dict(qB=qB,kB=kB,vB=vB,qA=qA,kA=kA,vA=vA,g=g,pq=pq,pk=pk)
def o_layout(o):
    return qtype_main(o), qtype_rem(o)
def o_from_layout(m, r):
    o = np.zeros((S,H,DH),np.float32)
    m = unbf16(m).reshape(H,64,64,8); r = unbf16(r).reshape(H,S,2)
    for h in range(H):
        mm = np.array(md(h))
        for hf in range(2):
            o[:,h,mm[MI[hf]]] = m[h,:,hf*32:(hf+1)*32,:].reshape(S,8)
        o[:,h,rd(h)] = r[h]
    return o
def attn_ref(q,k,v):
    o = np.zeros((S,H,DH),np.float32)
    for h in range(H):
        s = (q[:,h,:] @ k[:,h,:].T) * np.float32(18**-0.5)
        s -= s.max(1,keepdims=True)
        p = np.exp(s); p /= p.sum(1,keepdims=True)
        o[:,h,:] = p @ v[:,h,:]
    return o
def lin_ref(pq,pk,v):
    o = np.zeros((S,H,DH),np.float32)
    for h in range(H):
        kv = pk[:,h,:].T @ v[:,h,:]; z = pk[:,h,:].sum(0)
        o[:,h,:] = (pq[:,h,:]@kv)/((pq[:,h,:]@z)[:,None]+1e-6)
    return o
def wo_rowmap_main(h):
    m = np.array(md(h)); return 18*h + m[MI]
if __name__=="__main__":
    print("WS_END", WS_END, hex(WS_END))
    for n in ("OFF_QBM","OFF_QBR","OFF_KVB","OFF_PQM","OFF_PQR","OFF_PK","OFF_VA","OFF_KM","OFF_G","OFF_OAM","OFF_OAR","OFF_OBM","OFF_OBR"):
        print(n, globals()[n], hex(globals()[n]))
```

```python
import sys
sys.path.insert(0,'dev')
from fused import gen_f1, LDS_F
from k3 import gen_k3, LDS_K3
ref = open('gated_mix__linear_attn_block__mha_block__prompt.s.ref').read().split("\n")
hdr = [l for l in ref if l.startswith(";") and "@launch" not in l and "Override" not in l and "grid=ceil" not in l][:12]
def build(path, stamps=False, dbg=""):
    src = "\n".join(hdr) + f"""
; @launch kernel=f1_kernel grid=(256,1,1) block=(768,1,1) lds={LDS_F}
; @launch kernel=k3_kernel grid=(256,1,1) block=(512,1,1) lds={LDS_K3}
.amdgcn_target "amdgcn-amd-amdhsa--gfx950"
.text
""" + gen_f1(stamps=stamps, dbg=dbg) + gen_k3(stamps=stamps)
    open(path,"w").write(src)
if __name__=="__main__":
    build("f1.s"); build("f1_stamps.s", stamps=True)
    build("f1_nokv.s", stamps=True, dbg="nokv")
```

```python
from asmlib import *
from model import *
from k1d import QKV, SLOT, BIG, HS_KVB, HS_V, QSC, LOG2E, EPS
LDS_F = 163840
NSV = 4
FLAGS = 8*CH
KCELL = FLAGS + 64
SCELL = FLAGS + 256
OXCH = 41472
WQ = [0, 77824, 20736, 98560]
KVP = FLAGS + 512
C1 = 0
C2B = 16
C2A = 24
class QKVF(QKV):
    def loader_x_setup(self):
        a=self.a; s=self
        a(f"""
        v_lshrrev_b32 v{s.vT0}, 3, v{s.vLane}
        s_lshl_b32 s{s.sT0}, s{s.sW}, 3
        v_add_u32 v{s.vT0}, s{s.sT0}, v{s.vT0}
        v_lshrrev_b32 v{s.vT1}, 1, v{s.vT0}
        v_and_b32 v{s.vT1}, 7, v{s.vT1}
        v_and_b32 v{s.vT2}, 7, v{s.vLane}
        v_xor_b32 v{s.vT1}, v{s.vT1}, v{s.vT2}
        v_lshlrev_b32 v{s.vT1}, 4, v{s.vT1}
        s_lshl_b32 s{s.sT0}, s{s.sR}, 7
        v_add_u32 v{s.vT0}, s{s.sT0}, v{s.vT0}
        v_mul_u32_u24 v{s.vT0}, 1152, v{s.vT0}
        v_add_u32 v{s.vXG}, v{s.vT0}, v{s.vT1}
        s_lshl_b32 s{s.sM}, s{s.sW}, 10
        """)
    def chunk4(self, slot, c, far):
        a=self.a; s=self
        a(f"s_mov_b64 exec, s[{s.sMask}:{s.sMask+1}]")
        for k in range(8):
            a(f"s_add_u32 m0, s{s.sM}, {slot + k*4096}")
            if far:
                a("s_nop 0")
                a(f"global_load_lds_dwordx4 {v(s.vWG,2)}, off")
                a(f"v_lshl_add_u64 {v(s.vWG,2)}, {v(s.vWG,2)}, 0, s[72:73]")
            else:
                a(f"s_mov_b32 s{s.sT0}, {(c*64 + 8*k)*3456}")
                a(f"buffer_load_dwordx4 v{s.vWG}, s[72:75], s{s.sT0} offen lds")
        a("s_mov_b64 exec, -1")
        for k in range(4):
            a(f"s_add_u32 m0, s{s.sM}, {slot + 32768 + k*4096}")
            a(f"s_mov_b32 s{s.sT0}, {c*128 + k*32*1152}")
            a(f"buffer_load_dwordx4 v{s.vXG}, s[8:11], s{s.sT0} offen lds")
    def loader4(self, lbl, done_label):
        a=self.a; s=self
        n = 12
        for far in (False, True):
            if far:
                a(f"{lbl}_far:")
                s.setup_w()
                a(f"s_mov_b32 s72, {8*3456}\ns_mov_b32 s73, 0")
            else:
                s.loader_setup_w(lbl)
            s.chunk4(0, 0, far)
            a(f"v_lshlrev_b32 v{s.vT0}, 1, v{s.vLane}")
            for c in range(9): a(f"buffer_load_ushort v{s.vD+c}, v{s.vT0}, s[4:7], 0 offen offset:{128*c}")
            s.chunk4(SLOT, 1, far)
            a(f"s_waitcnt vmcnt({n})")
            for c in range(3): s.loader_gate(c*SLOT, c)
            a("s_waitcnt lgkmcnt(0)\ns_barrier")
            s.chunk4(2*SLOT, 2, far)
            for G in range(8):
                nout = n if G+2 <= 8 else 0
                a(f"s_waitcnt vmcnt({nout}) lgkmcnt(0)\ns_barrier")
                if G+3 <= 8:
                    s.loader_gate((G%3)*SLOT, G+3)
                    s.chunk4((G%3)*SLOT, G+3, far)
            a("s_barrier")
            if not far: a(f"s_branch {done_label}")
    def gemm3(self, isv, ch, lbl):
        a=self.a; s=self
        ntile = 4 if ch==0 else 3
        nr = 1 + 2*ntile
        def reads(st, b):
            a(f"ds_read_b128 {v(s.vXF[b],4)}, v{s.vXR[st]}")
            for tl in range(ntile):
                for u in range(2):
                    a(f"ds_read_b64_tr_b16 {v(s.vWF[b]+4*tl+2*u,2)}, v{s.vWR[tl]} offset:{(16*st+4*u)*512}")
        def mm(b):
            for tl in range(ntile):
                X, W = v(s.vXF[b],4), v(s.vWF[b]+4*tl,4)
                A,B = (X,W) if isv else (W,X)
                a(f"v_mfma_f32_32x32x16_bf16 {v(s.vD+16*tl,16)}, {A}, {B}, {v(s.vD+16*tl,16)}")
        a("s_barrier")
        s.stamp(2)
        reads(0,0)
        a(f"s_mov_b32 s{s.sC}, 0")
        a(f"{lbl}_loop:")
        for j in range(3):
            for st in range(3):
                reads(st+1, (st+1)&1)
                a(f"s_waitcnt lgkmcnt({nr})")
                mm(st&1)
            a("s_waitcnt lgkmcnt(0)")
            if j == 2:
                a(f"s_cmp_eq_u32 s{s.sC}, 2\ns_cbranch_scc1 {lbl}_last")
            a("s_barrier")
            d = SLOT if j < 2 else -2*SLOT
            for r in s.vWR[:ntile]+s.vXR: a(f"v_add_u32 v{r}, {d & 0xffffffff}, v{r}")
            reads(0, 0)
            if j == 2: a(f"s_add_u32 s{s.sC}, s{s.sC}, 1")
            mm(1)
        a(f"s_branch {lbl}_loop")
        a(f"{lbl}_last:")
        a("s_barrier")
        mm(1)
        a("s_nop 15\ns_nop 3")

    def phi8(self, regs, tmp):
        a=self.a
        n=len(regs)
        for i,r in enumerate(regs): a(f"v_mul_f32 v{tmp+i}, {LOG2E}, v{r}")
        for i,r in enumerate(regs): a(f"v_exp_f32_e64 v{tmp+i}, v{tmp+i} clamp")
        for i,r in enumerate(regs): a(f"v_max_f32 v{r}, 0, v{r}")
        for i,r in enumerate(regs): a(f"v_add_f32 v{tmp+i}, {EPS}, v{tmp+i}")
        for i,r in enumerate(regs): a(f"v_add_f32 v{r}, v{r}, v{tmp+i}")
    def phi_regs(self, regs, tmp): self.phi8(regs, tmp)
    def q_slice(self, b, sl, lbl):
        a=self.a; s=self; E=s.vE
        L = a.uid(lbl+"_s")
        s.list_kind(sl)
        a(f"""
        s_lshl_b32 s{s.sT0}, s{s.sHead}, 6
        s_add_u32 s{s.sT4}, s{s.sT0}, s{s.sT32}          ; head*64 + t32
        s_cmp_eq_u32 s{s.sKind}, 1
        s_cbranch_scc1 {L}_k
        s_cmp_eq_u32 s{s.sKind}, 2
        s_cbranch_scc1 {L}_phi
        """)
        for i in range(8): a(f"v_mul_f32 v{b+i}, {QSC}, v{b+i}")
        a(f"s_lshl_b32 s{s.sBase}, s{s.sT4}, 10\ns_add_u32 s{s.sBase}, s{s.sBase}, {OFF_QBM}\ns_branch {L}_st\n{L}_phi:")
        s.phi8([b+i for i in range(8)], E)
        a(f"s_lshl_b32 s{s.sBase}, s{s.sT4}, 10\ns_add_u32 s{s.sBase}, s{s.sBase}, {OFF_PQM}\ns_branch {L}_st\n{L}_k:")
        a(f"v_mul_f32 v{E}, v{b}, v{b}")
        for i in range(1,8): a(f"v_fmac_f32 v{E}, v{b+i}, v{b+i}")
        a(f"""
        v_mov_b32 v{E+2}, v{E}
        s_lshl_b32 s{s.sT1}, s{s.sT4}, 7
        s_add_u32 s{s.sT1}, s{s.sT1}, {OFF_KNM}
        v_permlane32_swap_b32 v{E}, v{E+2}
        s_mul_i32 s{s.sBase}, s{s.sHead}, {HS_KVB}
        s_add_u32 s{s.sBase}, s{s.sBase}, s{s.sKoff}
        v_add_f32 v{E}, v{E}, v{E+2}
        """)
        s.st(f"buffer_store_dword v{E}, v{s.vT5}, s[12:15], s{s.sT1} offen")
        a(f"{L}_st:")
        for i in range(4): a(f"v_cvt_pk_bf16_f32 v{b+i}, v{b+2*i}, v{b+2*i+1}")
        s.st(f"buffer_store_dwordx4 {v(b,4)}, v{s.vL16}, s[12:15], s{s.sBase} offen")
    def q_epilogue(self, lbl, ch):
        a=self.a; s=self; E=s.vE; vD=s.vD
        ntile = 4 if ch==0 else 2
        s.sKoff = 80; s.sKRoff = 81
        a(f"""
        v_cmp_gt_u32 vcc, 32, v{s.vLane}
        v_mov_b32 v{s.vT5}, {BIG}
        s_lshr_b32 s{s.sT0}, s{s.sT32}, 3
        s_mul_i32 s{s.sT0}, s{s.sT0}, {CH}
        s_add_u32 s{s.sT0}, s{s.sT0}, {OFF_KVB}
        v_cndmask_b32 v{s.vT5}, v{s.vT5}, v{s.vL4}, vcc
        s_and_b32 s{s.sT1}, s{s.sT32}, 7
        s_lshl_b32 s{s.sT2}, s{s.sT1}, 10
        s_add_u32 s{s.sKoff}, s{s.sT0}, s{s.sT2}
        s_lshl_b32 s{s.sT2}, s{s.sT1}, 7
        s_add_u32 s{s.sKRoff}, s{s.sT0}, s{s.sT2}
        s_add_u32 s{s.sKRoff}, s{s.sKRoff}, 8192
        """)
        for tl in range(ntile):
            tau = ch*4+tl
            s.q_slice(vD+16*tl, 2*tau, lbl)
            s.q_slice(vD+16*tl+8, 2*((tau+5)%6)+1, lbl)
        if ch == 1:
            b0 = vD+32
            L = a.uid(lbl+"_g")
            a(f"""
            s_cmp_lg_u32 s{s.sJt}, 0
            s_cbranch_scc1 {L}
            v_mul_f32 v{E}, 0xbfb8aa3b, v{b0+12}
            v_exp_f32 v{E}, v{E}
            s_lshl_b32 s{s.sT0}, s{s.sT32}, 7
            s_add_u32 s{s.sT0}, s{s.sT0}, {OFF_G}
            v_add_f32 v{E}, 1.0, v{E}
            v_rcp_f32 v{E}, v{E}
            s_nop 0
            """)
            s.st(f"buffer_store_dword v{E}, v{s.vT5}, s[12:15], s{s.sT0} offen")
            a(f"{L}:")
            for aa in range(3):
                L = a.uid(lbl+"_r")
                b = b0+4*aa
                s.list_kind(4*aa)
                a(f"""
                s_lshl_b32 s{s.sT0}, s{s.sHead}, 6
                s_add_u32 s{s.sT3}, s{s.sT0}, s{s.sT32}
                s_lshl_b32 s{s.sT3}, s{s.sT3}, 7             ; (head*64+t32)*128
                v_lshlrev_b32 v{s.vT1}, 14, v{s.vHf}
                v_add_u32 v{s.vT0}, v{s.vL4}, v{s.vT1}
                s_cmp_eq_u32 s{s.sKind}, 1
                s_cbranch_scc1 {L}_k
                s_cmp_eq_u32 s{s.sKind}, 2
                s_cbranch_scc1 {L}_phi
                """)
                for i in range(4): a(f"v_mul_f32 v{b+i}, {QSC}, v{b+i}")
                a(f"s_add_u32 s{s.sBase}, s{s.sT3}, {OFF_QBR}\ns_mov_b32 s{s.sT4}, 8192\ns_branch {L}_st\n{L}_phi:")
                s.phi8([b+i for i in range(4)], E)
                a(f"s_add_u32 s{s.sBase}, s{s.sT3}, {OFF_PQR}\ns_mov_b32 s{s.sT4}, 8192\ns_branch {L}_st\n{L}_k:")
                a(f"""
                v_mul_f32 v{E}, v{b}, v{b}
                v_mul_f32 v{E+1}, v{b+2}, v{b+2}
                v_fmac_f32 v{E}, v{b+1}, v{b+1}
                v_fmac_f32 v{E+1}, v{b+3}, v{b+3}
                s_add_u32 s{s.sT1}, s{s.sT3}, {OFF_KNR}
                s_add_u32 s{s.sT2}, s{s.sT1}, 8192
                """)
                s.st(f"buffer_store_dword v{E}, v{s.vT0}, s[12:15], s{s.sT1} offen")
                s.st(f"buffer_store_dword v{E+1}, v{s.vT0}, s[12:15], s{s.sT2} offen")
                a(f"""
                s_mul_i32 s{s.sBase}, s{s.sHead}, {HS_KVB}
                s_add_u32 s{s.sBase}, s{s.sBase}, s{s.sKRoff}
                s_mov_b32 s{s.sT4}, {HS_KVB}
                v_mul_u32_u24 v{s.vT1}, {2*HS_KVB}, v{s.vHf}
                v_add_u32 v{s.vT0}, v{s.vL4}, v{s.vT1}
                {L}_st:
                v_cvt_pk_bf16_f32 v{b}, v{b}, v{b+1}
                v_cvt_pk_bf16_f32 v{b+1}, v{b+2}, v{b+3}
                s_add_u32 s{s.sT4}, s{s.sT4}, s{s.sBase}
                """)
                s.st(f"buffer_store_dword v{b}, v{s.vT0}, s[12:15], s{s.sBase} offen")
                s.st(f"buffer_store_dword v{b+1}, v{s.vT0}, s[12:15], s{s.sT4} offen")
        a("s_barrier")
    def v_stage(self, b, vAddr, vKind, lbl):
        a=self.a; s=self; E=s.vE
        L = a.uid(lbl+"_v")
        a(f"v_cmp_eq_u32 vcc, 1, v{vKind}\ns_nop 3\ns_cmp_eq_u64 vcc, 0\ns_cbranch_scc1 {L}")
        for half in range(2):
            regs = [b+8*half+i for i in range(8)]
            for i,r in enumerate(regs): a(f"v_mov_b32 v{E+8+i}, v{r}")
            s.phi8([E+8+i for i in range(8)], E)
            for i,r in enumerate(regs): a(f"v_cndmask_b32 v{r}, v{r}, v{E+8+i}, vcc")
        a(f"{L}:")
        for hs in range(2):
            for i in range(4): a(f"v_cvt_pk_bf16_f32 v{b+8*hs+i}, v{b+8*hs+2*i}, v{b+8*hs+2*i+1}")
        a(f"ds_write_b128 v{vAddr}, {v(b,4)}")
        a(f"ds_write_b128 v{vAddr}, {v(b+8,4)} offset:640")
    def v_epilogue(self, lbl, ch):
        a=self.a; s=self; E=s.vE; vD=s.vD
        T0,T1,T2,T3,T4,T5 = s.vT0,s.vT1,s.vT2,s.vT3,s.vT4,s.vT5
        ntile = 4 if ch==0 else 2
        a(f"""
        v_mul_u32_u24 v{T5}, 320, v{s.vHf}
        s_mul_i32 s{s.sT0}, s{s.sRt}, 1280
        v_add_u32 v{T5}, s{s.sT0}, v{T5}
        s_mul_i32 s{s.sT4}, s{s.sJ8}, 12
        """)
        for tl in range(ntile):
            tau = ch*4+tl
            sA, sB = 2*tau, 2*((tau+5)%6)+1
            a(f"""
            v_cmp_gt_u32 vcc, 16, v{s.vTok}
            v_mov_b32 v{T0}, {sB}
            v_mov_b32 v{T1}, {sA}
            v_cndmask_b32 v{T0}, v{T0}, v{T1}, vcc           ; slice
            v_add_u32 v{T2}, s{s.sT4}, v{T0}
            v_lshrrev_b32 v{T2}, 5, v{T2}                    ; kind
            v_mul_u32_u24 v{T0}, 5120, v{T0}
            v_and_b32 v{T1}, 15, v{s.vTok}
            v_lshlrev_b32 v{T1}, 4, v{T1}
            v_add_u32 v{T0}, v{T0}, v{T1}
            v_add_u32 v{T0}, v{T0}, v{T5}
            """)
            s.v_stage(vD+16*tl, T0, T2, lbl)
        if ch == 1:
            b0 = vD+32
            a(f"""
            v_lshrrev_b32 v{T0}, 2, v{s.vTok}
            v_lshlrev_b32 v{T0}, 1, v{T0}
            v_bfe_u32 v{T1}, v{s.vTok}, 1, 1
            v_add_u32 v{T0}, v{T0}, v{T1}                    ; slice = 2i + (e>>1)
            v_add_u32 v{T2}, s{s.sT4}, v{T0}
            v_lshrrev_b32 v{T2}, 5, v{T2}
            v_mul_u32_u24 v{T0}, 5120, v{T0}
            v_and_b32 v{T1}, 1, v{s.vTok}
            v_lshlrev_b32 v{T1}, 4, v{T1}
            v_add_u32 v{T0}, v{T0}, v{T1}
            v_add_u32 v{T0}, 256, v{T0}
            v_add_u32 v{T0}, v{T0}, v{T5}
            v_cmp_gt_u32 vcc, 24, v{s.vTok}
            v_mov_b32 v{T1}, 0x10000000
            s_nop 0
            v_cndmask_b32 v{T0}, v{T1}, v{T0}, vcc
            """)
            s.v_stage(b0, T0, T2, lbl)
            a(f"""
            v_mul_u32_u24 v{T0}, 5120, v{s.vTok}
            v_add_u32 v{T0}, {18*16}, v{T0}
            v_add_u32 v{T0}, v{T0}, v{T5}
            v_cmp_gt_u32 vcc, 12, v{s.vTok}
            v_mov_b32 v{T1}, 0x10000000
            v_mov_b32 v{E}, 0x3f803f80
            v_mov_b32 v{E+1}, 0x3f803f80
            v_cndmask_b32 v{T0}, v{T1}, v{T0}, vcc
            v_mov_b32 v{E+2}, 0x3f803f80
            v_mov_b32 v{E+3}, 0x3f803f80
            ds_write_b128 v{T0}, {v(E,4)}
            ds_write_b128 v{T0}, {v(E,4)} offset:640
            """)
        a("s_waitcnt lgkmcnt(0)\ns_barrier")
        D = vD
        for i in range(8):
            L = a.uid(lbl+"_c")
            if i == 7: a(f"s_cmp_ge_u32 s{s.sW}, 4\ns_cbranch_scc1 {L}")
            a(f"""
            s_add_u32 s{s.sT0}, s{s.sW}, {8*i}
            s_lshl_b32 s{s.sT1}, s{s.sT0}, 10
            v_add_u32 v{T0}, s{s.sT1}, v{s.vL16}
            ds_read_b128 {v(D+4*i,4)}, v{T0}
            """)
            if i == 7: a(f"{L}:")
        for i in range(8):
            L = a.uid(lbl+"_d")
            if i == 7: a(f"s_cmp_ge_u32 s{s.sW}, 4\ns_cbranch_scc1 {L}")
            a(f"""
            s_add_u32 s{s.sT0}, s{s.sW}, {8*i}
            s_mul_i32 s{s.sT1}, s{s.sT0}, 13108
            s_lshr_b32 s{s.sT1}, s{s.sT1}, 16            ; slice
            s_mul_i32 s{s.sT2}, s{s.sT1}, 5
            s_sub_u32 s{s.sT2}, s{s.sT0}, s{s.sT2}       ; part
            s_add_u32 s{s.sT1}, s{s.sT1}, s{s.sT4}
            s_lshr_b32 s{s.sKind}, s{s.sT1}, 5
            s_and_b32 s{s.sHead}, s{s.sT1}, 31
            s_mul_i32 s{s.sBase}, s{s.sHead}, {HS_V}
            s_add_u32 s{s.sBase}, s{s.sBase}, s{s.sVA}
            s_cmp_eq_u32 s{s.sKind}, 1
            s_cselect_b32 s{s.sT3}, {(OFF_PK-OFF_VA) & 0xffffffff}, 0
            s_add_u32 s{s.sBase}, s{s.sBase}, s{s.sT3}
            s_mul_i32 s{s.sT3}, s{s.sHead}, {HS_KVB}
            s_add_u32 s{s.sT3}, s{s.sT3}, s{s.sVB}
            s_cmp_eq_u32 s{s.sKind}, 0
            s_cselect_b32 s{s.sBase}, s{s.sT3}, s{s.sBase}
            s_lshl_b32 s{s.sT2}, s{s.sT2}, 10
            s_add_u32 s{s.sBase}, s{s.sBase}, s{s.sT2}
            s_waitcnt lgkmcnt({max(6-i,0)})
            """)
            s.st(f"buffer_store_dwordx4 {v(D+4*i,4)}, v{s.vL16}, s[12:15], s{s.sBase} offen")
            if i == 7: a(f"{L}:")
    def v_consts(self):
        a=self.a; s=self
        s.sVB, s.sVA = 82, 83
        a(f"""
        s_lshr_b32 s{s.sT0}, s{s.sR}, 1
        s_mul_i32 s{s.sT0}, s{s.sT0}, {CH}
        s_and_b32 s{s.sT1}, s{s.sR}, 1
        s_mul_i32 s{s.sT1}, s{s.sT1}, 5120
        s_add_u32 s{s.sVB}, s{s.sT0}, s{s.sT1}
        s_add_u32 s{s.sVB}, s{s.sVB}, {OFF_KVB+9216}
        s_mul_i32 s{s.sVA}, s{s.sR}, 5120
        s_add_u32 s{s.sVA}, s{s.sVA}, {OFF_VA}
        """)

class ATT:
    def __init__(self, a, name):
        self.a=a; self.name=name
        s=self
        s.vLane, s.vT0, s.vT1, s.vT2, s.vT3 = 1,2,3,4,5
        s.vAK, s.vAR, s.vAV = 6,7,8
        s.vOffQ, s.vOffR, s.vL4 = 9,10,11
        s.vQ1=[12,16]; s.vQ2=[20,24]; s.vK1=[28,32]; s.vKR=[36,38]; s.vV=[40,48]; s.vP=56; s.vM=[64,65]
        s.vS=[68,84]; s.vO=[100,116]; s.vNM=[132,148]
        s.sW=24
        s.sHead,s.sQb,s.sQt,s.sT0,s.sT1,s.sT2,s.sT3 = 26,27,28,29,30,31,32
        s.sKVB,s.sFlag,s.sQM,s.sQR,s.sHalf,s.sP,s.sOM,s.sOR = 33,34,35,36,37,38,39,40
        s.sF0 = 42
        s.sPass = 44
        s.sKV = 45
    def ids(self):
        a=self.a; s=self
        a(f"""
        s_and_b32 s{s.sHead}, s2, 7
        s_lshl_b32 s{s.sHead}, s{s.sHead}, 2
        s_lshr_b32 s{s.sT0}, s2, 3
        s_and_b32 s{s.sT1}, s{s.sT0}, 3
        s_add_u32 s{s.sHead}, s{s.sHead}, s{s.sT1}
        s_lshr_b32 s{s.sQb}, s2, 5
        v_and_b32 v{s.vLane}, 63, v0
        v_lshlrev_b32 v{s.vOffQ}, 4, v{s.vLane}
        v_and_b32 v{s.vT1}, 31, v{s.vLane}
        v_lshrrev_b32 v{s.vT2}, 5, v{s.vLane}
        v_lshlrev_b32 v{s.vL4}, 2, v{s.vT1}
        s_mul_i32 s{s.sKVB}, s{s.sHead}, {8*CH}
        s_add_u32 s{s.sKVB}, s{s.sKVB}, {OFF_KVB}
        """)
    def compute_pre(self):
        a=self.a; s=self
        s.ids()
        a(f"""
        s_and_b32 s{s.sP}, s{s.sW}, 3
        s_lshr_b32 s{s.sHalf}, s{s.sW}, 2
        s_lshl_b32 s{s.sQt}, s{s.sQb}, 3
        s_lshl_b32 s{s.sT0}, s{s.sP}, 1
        s_add_u32 s{s.sQt}, s{s.sQt}, s{s.sT0}
        s_lshl_b32 s{s.sT0}, s{s.sHead}, 6
        s_add_u32 s{s.sT0}, s{s.sT0}, s{s.sQt}
        s_lshl_b32 s{s.sQM}, s{s.sT0}, 10
        s_lshl_b32 s{s.sQR}, s{s.sT0}, 7
        s_lshl_b32 s{s.sT1}, s{s.sHalf}, 10
        s_add_u32 s{s.sOM}, s{s.sQM}, s{s.sT1}
        s_lshl_b32 s{s.sT1}, s{s.sHalf}, 7
        s_add_u32 s{s.sOR}, s{s.sQR}, s{s.sT1}
        s_mul_i32 s{s.sT0}, s{s.sHalf}, {4*CH}
        v_add_u32 v{s.vAK}, s{s.sT0}, v{s.vOffQ}
        v_lshlrev_b32 v{s.vT0}, 4, v{s.vT1}
        v_mul_u32_u24 v{s.vAV}, 320, v{s.vT2}
        v_add_u32 v{s.vAV}, v{s.vAV}, v{s.vT0}
        v_add_u32 v{s.vAR}, 8192, v{s.vL4}
        v_add_u32 v{s.vAR}, s{s.sT0}, v{s.vAR}
        v_add_u32 v{s.vAV}, 9216, v{s.vAV}
        v_add_u32 v{s.vAV}, s{s.sT0}, v{s.vAV}
        v_mov_b32 v{s.vT0}, 0x10000000
        v_cmp_gt_u32 vcc, 19, v{s.vT1}
        s_nop 1
        v_cndmask_b32 v{s.vAV}, v{s.vT0}, v{s.vAV}, vcc
        v_cmp_gt_u32 vcc, 32, v{s.vLane}
        s_nop 1
        v_cndmask_b32 v{s.vAR}, v{s.vT0}, v{s.vAR}, vcc
        v_mov_b32 v{s.vT0}, {BIG}
        v_cndmask_b32 v{s.vOffR}, v{s.vT0}, v{s.vL4}, vcc
        """)
        for i in range(16): a(f"v_mov_b32 v{s.vO[0]+i}, 0\nv_mov_b32 v{s.vO[1]+i}, 0")
        for i in range(8): a(f"v_mov_b32 v{s.vP+i}, 0")
        for i in range(16): a(f"v_mov_b32 v{s.vV[0]+i}, 0")
    def compute_main(self):
        a=self.a; s=self; name=s.name
        vT0,vT1,vT2,vT3,vLane = s.vT0,s.vT1,s.vT2,s.vT3,s.vLane
        vQ1,vQ2,vM,vS,vO,vNM,vK1,vKR,vV,vP = s.vQ1,s.vQ2,s.vM,s.vS,s.vO,s.vNM,s.vK1,s.vKR,s.vV,s.vP
        sT0,sT1,sT2,sT3,sF0 = s.sT0,s.sT1,s.sT2,s.sT3,s.sF0
        a(f"""
        s_add_u32 s{sT0}, s{s.sQM}, {OFF_QBM}
        s_add_u32 s{sT1}, s{s.sQR}, {OFF_QBR}
        buffer_load_dwordx4 {v(vQ1[0],4)}, v{s.vOffQ}, s[12:15], s{sT0} offen sc1
        buffer_load_dwordx4 {v(vQ1[1],4)}, v{s.vOffQ}, s[12:15], s{sT0} offen offset:1024 sc1
        buffer_load_dword v{vQ2[0]}, v{s.vL4}, s[12:15], s{sT1} offen sc1
        buffer_load_dword v{vQ2[1]}, v{s.vL4}, s[12:15], s{sT1} offen offset:128 sc1
        v_cmp_gt_u32 vcc, 32, v{vLane}
        s_waitcnt vmcnt(0)
        v_cndmask_b32 v{vQ2[0]}, 0, v{vQ2[0]}, vcc
        v_cndmask_b32 v{vQ2[1]}, 0, v{vQ2[1]}, vcc
        """)
        for i in range(4):
            a(f"""
            v_dot2_f32_bf16 v{vT0}, v{vQ1[0]+i}, v{vQ1[0]+i}, {('0' if i==0 else 'v%d'%vT0)}
            v_dot2_f32_bf16 v{vT1}, v{vQ1[1]+i}, v{vQ1[1]+i}, {('0' if i==0 else 'v%d'%vT1)}
            """)
        a(f"""
        v_dot2_f32_bf16 v{vT0}, v{vQ2[0]}, v{vQ2[0]}, v{vT0}
        v_dot2_f32_bf16 v{vT1}, v{vQ2[1]}, v{vQ2[1]}, v{vT1}
        s_barrier
        v_and_b32 v{vT2}, 15, v{vLane}
        v_lshlrev_b32 v{vT2}, 3, v{vT2}
        v_add_u32 v{vT2}, {KCELL}, v{vT2}
        ds_read_b64 {v(vM[0],2)}, v{vT2}
        s_waitcnt lgkmcnt(0)
        """)
        for k in (1,2,4,8):
            a(f"v_max_u32_dpp v{vM[0]}, v{vM[0]}, v{vM[0]} row_ror:{k} row_mask:0xf bank_mask:0xf")
            a(f"v_max_u32_dpp v{vM[1]}, v{vM[1]}, v{vM[1]} row_ror:{k} row_mask:0xf bank_mask:0xf\ns_nop 0")
        a(f"""
        s_nop 0
        v_add_f32 v{vM[1]}, v{vM[0]}, v{vM[1]}
        v_mov_b32 v{vQ2[0]+1}, 0
        v_mov_b32 v{vQ2[0]+2}, 0
        v_mov_b32 v{vQ2[0]+3}, v{vQ2[0]}
        v_mov_b32 v{vQ2[1]+1}, 0
        v_mov_b32 v{vQ2[1]+2}, 0
        v_mov_b32 v{vQ2[1]+3}, v{vQ2[1]}
        v_mov_b32 v{vT2}, v{vT0}
        v_mov_b32 v{vT3}, v{vT1}
        s_nop 1
        v_permlane32_swap_b32 v{vT0}, v{vT2}
        v_permlane32_swap_b32 v{vT1}, v{vT3}
        s_nop 1
        v_add_f32 v{vT0}, v{vT0}, v{vT2}
        v_add_f32 v{vT1}, v{vT1}, v{vT3}
        v_mul_f32 v{vT0}, v{vT0}, v{vM[1]}
        v_mul_f32 v{vT1}, v{vT1}, v{vM[1]}
        v_sqrt_f32 v{vT0}, v{vT0}
        v_sqrt_f32 v{vT1}, v{vT1}
        s_nop 0
        v_mul_f32 v{vM[0]}, 0x3f828f5c, v{vT0}
        v_mul_f32 v{vM[1]}, 0x3f828f5c, v{vT1}
        v_add_f32 v{vM[0]}, 0x3a83126f, v{vM[0]}
        v_add_f32 v{vM[1]}, 0x3a83126f, v{vM[1]}
        v_max_f32 v{vT0}, v{vM[0]}, v{vM[1]}
        v_mov_b32 v{vT1}, 0x42400000
        v_cmp_nle_f32 vcc, v{vT0}, v{vT1}
        v_cmp_u_f32 s[{sF0}:{sF0+1}], v{vM[0]}, v{vM[1]}
        s_nop 3
        s_or_b64 vcc, vcc, s[{sF0}:{sF0+1}]
        s_cmp_lg_u64 vcc, 0
        s_cselect_b32 s{s.sFlag}, 1, 0
        v_mov_b32 v{vT2}, s{s.sFlag}
        s_lshl_b32 s{sT0}, s{s.sW}, 2
        s_add_u32 s{sT0}, s{sT0}, {FLAGS}
        v_mov_b32 v{vT3}, s{sT0}
        ds_write_b32 v{vT3}, v{vT2}
        """)
        def set_negm():
            for q in range(2):
                a(f"v_sub_f32 v{vNM[q]}, 0, v{vM[q]}")
                for i in range(1,16): a(f"v_mov_b32 v{vNM[q]+i}, v{vNM[q]}")
        set_negm()
        a("s_waitcnt lgkmcnt(0)\ns_barrier")
        s.stamp(8)
        s.read_flag()
        a(f"s_cbranch_scc0 {name}_fb")
        a(f"{name}_fast:")
        def koff(t): return t*1024 if t < 8 else CH + (t-8)*1024
        def roff(t): return t*128 if t < 8 else CH + (t-8)*128
        def voff(t,j): return (t*2+j)*640 if t < 8 else CH + ((t-8)*2+j)*640
        def rdK(t):
            a.ds(f"ds_read_b128 {v(vK1[t&1],4)}, v{s.vAK} offset:{koff(t)}", ("k",t))
            if t%2==0:
                if t < 8:
                    a.ds(f"ds_read2_b32 {v(vKR[(t//2)&1],2)}, v{s.vAR} offset0:{roff(t)//4} offset1:{roff(t)//4+32}", ("k",t))
                else:
                    a(f"v_add_u32 v{vT0}, {CH}, v{s.vAR}")
                    a.ds(f"ds_read2_b32 {v(vKR[(t//2)&1],2)}, v{vT0} offset0:0 offset1:32", ("k",t))
        def rdV(t):
            a.ds(f"ds_read_b128 {v(vV[t&1],4)}, v{s.vAV} offset:{voff(t,0)}", ("v",t))
            a.ds(f"ds_read_b128 {v(vV[t&1]+4,4)}, v{s.vAV} offset:{voff(t,1)}", ("v",t))
        def S1(u):
            t,q = u//2,u%2
            a(f"v_mfma_f32_32x32x16_bf16 {v(vS[u&1],16)}, {v(vK1[t&1],4)}, {v(vQ1[q],4)}, {v(vNM[q],16)}")
        def S2(u):
            t,q = u//2,u%2
            a(f"v_mfma_f32_32x32x8_bf16 {v(vS[u&1],16)}, {v(vKR[(t//2)&1],2)}, {v(vQ2[q]+2*(t&1),2)}, {v(vS[u&1],16)}")
        def PV(u,j):
            t,q = (u//2),u%2
            a(f"v_mfma_f32_32x32x16_bf16 {v(vO[q],16)}, {v(vV[t&1]+4*j,4)}, {v(vP+4*j,4)}, {v(vO[q],16)}")
        a.lg=[]
        rdK(0); rdV(0); rdK(1)
        a.wait_lg(("k",0))
        S1(0); S2(0)
        a(f"s_mov_b32 s{s.sPass}, 0\ns_nop 7\ns_nop 3")
        a(f"{name}_loop:")
        a.lg=[("v",0),("v",0),("k",1)]
        for u in range(16):
            t,q = u//2,u%2
            cur = vS[u&1]
            E = lambda i: a(f"v_exp_f32 v{cur+i}, v{cur+i}")
            C = lambda p: a(f"v_cvt_pk_bf16_f32 v{vP+p}, v{cur+2*p}, v{cur+2*p+1}")
            def G(g):
                for i in range(4*g,4*g+4): E(i)
                C(2*g); C(2*g+1)
            if q == 0 and t == 6:
                a("s_barrier")
            a.wait_lg(("k", (u+1)//2))
            S1(u+1)
            G(0)
            PV(u-1 if u>0 else 15, 1)
            if q == 0: rdV(t+1)
            else: rdK(t+2)
            G(1)
            S2(u+1)
            G(2)
            a.wait_lg(("v", t))
            PV(u, 0)
            G(3)
        assert a.lg == [("v",8),("v",8),("k",9)], a.lg
        a(f"""
        v_add_u32 v{s.vAK}, {CH}, v{s.vAK}
        v_add_u32 v{s.vAR}, {CH}, v{s.vAR}
        v_add_u32 v{s.vAV}, {CH}, v{s.vAV}
        s_add_u32 s{s.sPass}, s{s.sPass}, 1
        s_cmp_lt_u32 s{s.sPass}, 4
        s_cbranch_scc1 {name}_loop
        """)
        PV(15, 1)
        s.stamp(9)
        a.lg=[]
        a("s_waitcnt lgkmcnt(0)\ns_nop 7\ns_nop 3\ns_barrier")
        if s.full:
            s.p45_ids()
            s.p45_oloads(0)
            a(f"""
            s_lshr_b32 s{sT0}, s{s.sOR}, 0
            s_and_b32 s{sT0}, s{sT0}, 0x1fff
            s_add_u32 s{sT0}, s{sT0}, {OFF_G}
            buffer_load_dword v64, v{s.vL4}, s[12:15], s{sT0} offen sc1
            """)
        a(f"s_mul_i32 s{sT0}, s{s.sW}, 3072\ns_add_u32 s{sT0}, s{sT0}, {OXCH}\nv_add_u32 v{vT0}, s{sT0}, v{s.vOffQ}")
        a(f"s_cmp_eq_u32 s{s.sHalf}, 0\ns_cbranch_scc1 {name}_h0")
        for qd in range(3): a(f"ds_write_b128 v{vT0}, {v(vO[0]+4*qd,4)} offset:{1024*qd}")
        a("s_waitcnt lgkmcnt(0)")
        for i in range(12): a(f"v_mov_b32 v{vO[0]+i}, v{vO[1]+i}")
        a(f"s_branch {name}_h1\n{name}_h0:")
        for qd in range(3): a(f"ds_write_b128 v{vT0}, {v(vO[1]+4*qd,4)} offset:{1024*qd}")
        a(f"{name}_h1:")
        a("s_waitcnt lgkmcnt(0)\ns_barrier")
        a(f"s_xor_b32 s{sT1}, s{s.sW}, 4\ns_mul_i32 s{sT1}, s{sT1}, 3072\ns_add_u32 s{sT1}, s{sT1}, {OXCH}\nv_add_u32 v{vT1}, s{sT1}, v{s.vOffQ}")
        for qd in range(3): a(f"ds_read_b128 {v(vS[0]+4*qd,4)}, v{vT1} offset:{1024*qd}")
        a("s_waitcnt lgkmcnt(0)")
        for i in range(12): a(f"v_add_f32 v{vO[0]+i}, v{vO[0]+i}, v{vS[0]+i}")
        if s.full:
            a("s_waitcnt vmcnt(0)\nv_sub_f32 v64, 1.0, v64")
            s.norm_store(vO[0], OFF_OBM, OFF_OBR, False, s.sOM, s.sOR, 64)
            s.stamp(10)
            s.p45_compute()
        else:
            s.norm_store(vO[0], OFF_OBM, OFF_OBR, False, s.sOM, s.sOR)
            a("s_waitcnt vmcnt(0)\ns_barrier")
    def p45_ids(self):
        a=self.a; s=self
        s.sCol, s.sRow, s.sKq, s.sQt2 = 70, 71, 72, 73
        a(f"""
        s_and_b32 s{s.sRow}, s2, 7
        s_lshl_b32 s{s.sRow}, s{s.sRow}, 2
        s_lshr_b32 s{s.sT2}, s2, 3
        s_and_b32 s{s.sT3}, s{s.sT2}, 3
        s_add_u32 s{s.sRow}, s{s.sRow}, s{s.sT3}
        s_lshr_b32 s{s.sCol}, s{s.sT2}, 2
        s_lshr_b32 s{s.sKq}, s{s.sW}, 1
        s_and_b32 s{s.sT3}, s{s.sW}, 1
        s_lshl_b32 s{s.sQt2}, s{s.sRow}, 1
        s_add_u32 s{s.sQt2}, s{s.sQt2}, s{s.sT3}
        """)
    def p45_oloads(self, br):
        a=self.a; s=self
        offM = OFF_OAM if br==0 else OFF_OBM
        offR = OFF_OAR if br==0 else OFF_OBR
        vOM = 28
        a(f"""
        s_lshl_b32 s{s.sT2}, s{s.sKq}, 9
        s_add_u32 s{s.sT2}, s{s.sT2}, s{s.sQt2}
        s_lshl_b32 s{s.sT2}, s{s.sT2}, 10
        s_add_u32 s{s.sT2}, s{s.sT2}, {offM}
        """)
        for i in range(8):
            a(f"buffer_load_dwordx4 {v(vOM+4*i,4)}, v{s.vOffQ}, s[12:15], s{s.sT2} offen sc1")
            if i<7: a(f"s_add_u32 s{s.sT2}, s{s.sT2}, 65536")
        a(f"""
        s_lshl_b32 s{s.sT2}, s{s.sKq}, 16
        s_lshl_b32 s{s.sT3}, s{s.sQt2}, 7
        s_add_u32 s{s.sT2}, s{s.sT2}, s{s.sT3}
        s_add_u32 s{s.sT2}, s{s.sT2}, {offR}
        v_lshrrev_b32 v65, 5, v{s.vLane}
        v_lshlrev_b32 v65, 15, v65
        v_add_u32 v65, v65, v{s.vL4}
        """)
        for i in range(4):
            a(f"buffer_load_dword v{vOM+32+i}, v65, s[12:15], s{s.sT2} offen sc1")
            if i<3: a(f"s_add_u32 s{s.sT2}, s{s.sT2}, 8192")
    def p45_compute(self):
        a=self.a; s=self; name=s.name
        vT0,vT1,vT2,vT3,vLane = s.vT0,s.vT1,s.vT2,s.vT3,s.vLane
        vOM, vWF, vD = 28, [68, 80], 116
        vWR, vWR2 = 6, 7
        a(f"""
        v_lshrrev_b32 v{vT0}, 4, v{vLane}
        v_and_b32 v{vT1}, 1, v{vT0}
        v_lshrrev_b32 v{vT0}, 1, v{vT0}
        v_and_b32 v{vT2}, 15, v{vLane}
        v_lshrrev_b32 v{vT3}, 2, v{vT2}
        v_and_b32 v{vT2}, 3, v{vT2}
        v_lshlrev_b32 v{vT1}, 5, v{vT1}
        v_lshlrev_b32 v{vT2}, 3, v{vT2}
        v_add_u32 v{vT1}, v{vT1}, v{vT2}
        v_mul_u32_u24 v{vT3}, 144, v{vT3}
        v_add_u32 v{vT1}, v{vT1}, v{vT3}
        s_and_b32 s{s.sT2}, s{s.sKq}, 1
        s_mul_i32 s{s.sT2}, s{s.sT2}, {WQ[1]}
        s_lshr_b32 s{s.sT3}, s{s.sKq}, 1
        s_mul_i32 s{s.sT3}, s{s.sT3}, {WQ[2]}
        s_add_u32 s{s.sT2}, s{s.sT2}, s{s.sT3}
        v_add_u32 v{vT1}, s{s.sT2}, v{vT1}
        v_mul_u32_u24 v{vT2}, {4*144}, v{vT0}
        v_add_u32 v{vWR}, v{vT1}, v{vT2}
        v_mul_u32_u24 v{vT2}, {4*18*144}, v{vT0}
        v_add_u32 v{vWR2}, v{vT1}, v{vT2}
        """)
        st = []
        for i in range(8):
            off = 0 if i%2==0 else 2
            st.append((vWR, [(18*i+off+8*u)*144 for u in range(2)], v(vOM+4*i,4)))
        st.append((vWR2, [(18*(2*u)+16)*144 for u in range(2)], v(vOM+32,4)))
        def part(first):
            a.lg=[]
            def rd(k):
                reg, offs, _ = st[k]
                for tl in range(3):
                    for u in range(2):
                        a.ds(f"ds_read_b64_tr_b16 {v(vWF[k&1]+4*tl+2*u,2)}, v{reg} offset:{offs[u]+64*tl}", ("w",k))
            rd(0)
            for k in range(9):
                if k+1 < 9: rd(k+1)
                a.wait_lg(("w",k))
                for tl in range(3):
                    C = "0" if (first and k==0) else v(vD+16*tl,16)
                    a(f"v_mfma_f32_32x32x16_bf16 {v(vD+16*tl,16)}, {v(vWF[k&1]+4*tl,4)}, {st[k][2]}, {C}")
        part(True)
        a("s_waitcnt vmcnt(0)\ns_barrier")
        s.stamp(11)
        a("s_barrier")
        s.stamp(12)
        s.p45_oloads(1)
        a("s_waitcnt vmcnt(0)")
        part(False)
        a("s_nop 15\ns_nop 3\ns_barrier")
        s.stamp(13)
        a(f"""
        s_and_b32 s{s.sT3}, s{s.sW}, 1
        s_lshl_b32 s{s.sT2}, s{s.sT3}, 5
        v_and_b32 v{vT1}, 31, v{vLane}
        v_add_u32 v{vT0}, s{s.sT2}, v{vT1}
        v_mul_u32_u24 v{vT0}, 304, v{vT0}
        s_mul_i32 s{s.sT2}, s{s.sKq}, {64*304}
        v_add_u32 v{vT0}, s{s.sT2}, v{vT0}
        v_lshrrev_b32 v{vT1}, 5, v{vLane}
        v_lshlrev_b32 v{vT1}, 4, v{vT1}
        v_add_u32 v{vT0}, v{vT0}, v{vT1}
        """)
        for tl in range(3):
            for aa in range(4):
                if tl==2 and aa>0: continue
                a(f"ds_write_b128 v{vT0}, {v(vD+16*tl+4*aa,4)} offset:{(32*tl+8*aa)*4}")
        a("s_waitcnt lgkmcnt(0)\ns_barrier")
        def final(task):
            R = 28
            a(f"""
            v_mul_u32_u24 v{vT1}, 7282, v{task}
            v_lshrrev_b32 v{vT1}, 16, v{vT1}
            v_mul_u32_u24 v{vT2}, 9, v{vT1}
            v_sub_u32 v{vT2}, v{task}, v{vT2}
            v_mul_u32_u24 v{vT3}, 304, v{vT1}
            v_lshlrev_b32 v66, 5, v{vT2}
            v_add_u32 v{vT3}, v{vT3}, v66
            """)
            for kq in range(4):
                a(f"ds_read_b128 {v(R+8*kq,4)}, v{vT3} offset:{kq*64*304}")
                a(f"ds_read_b128 {v(R+8*kq+4,4)}, v{vT3} offset:{kq*64*304+16}")
            a(f"""
            s_lshl_b32 s{s.sT2}, s{s.sRow}, 6
            v_add_u32 v{vT1}, s{s.sT2}, v{vT1}
            v_mul_u32_u24 v{vT1}, 1152, v{vT1}
            v_lshlrev_b32 v{vT2}, 4, v{vT2}
            v_add_u32 v{vT1}, v{vT1}, v{vT2}
            s_mul_i32 s{s.sT2}, s{s.sCol}, 144
            s_waitcnt lgkmcnt(0)
            """)
            for i in range(8):
                a(f"v_add_f32 v{R+i}, v{R+i}, v{R+8+i}")
                a(f"v_add_f32 v{R+16+i}, v{R+16+i}, v{R+24+i}")
            for i in range(8): a(f"v_add_f32 v{R+i}, v{R+i}, v{R+16+i}")
            for p in range(4): a(f"v_cvt_pk_bf16_f32 v{60+p}, v{R+2*p}, v{R+2*p+1}")
            a(f"buffer_store_dwordx4 v[60:63], v{vT1}, s[88:91], s{s.sT2} offen")
        a(f"v_and_b32 v{vT0}, 0x3ff, v0")
        final(vT0)
        a(f"s_cmp_lg_u32 s{s.sW}, 0\ns_cbranch_scc1 {name}_fin")
        a(f"v_add_u32 v{vT0}, 512, v{vLane}\ns_nop 1")
        final(vT0)
        a(f"{name}_fin:")
    def w_patterns(self):
        a=self.a; s=self
        for n in range(9):
            a(f"""
            v_add_u32 v{s.vT0}, {64*n}, v{s.vLane}
            v_mul_u32_u24 v{s.vT1}, 7282, v{s.vT0}
            v_lshrrev_b32 v{s.vT1}, 16, v{s.vT1}
            v_mul_u32_u24 v{s.vT2}, 9, v{s.vT1}
            v_sub_u32 v{s.vT2}, v{s.vT0}, v{s.vT2}
            v_mul_u32_u24 v{s.vT1}, 1152, v{s.vT1}
            v_lshlrev_b32 v{s.vT2}, 4, v{s.vT2}
            v_add_u32 v{140+n}, v{s.vT1}, v{s.vT2}
            """)
    def w_quarter_dma(self, srd, sq, sreg):
        a=self.a; s=self
        a(f"""
        s_mul_i32 s{s.sT0}, s{sq}, {144*1152}
        s_mul_i32 s{s.sT1}, s{s.sCol}, 144
        s_add_u32 s{s.sT0}, s{s.sT0}, s{s.sT1}
        """)
        for n in range(21):
            if n == 20: a("s_mov_b64 exec, 0xffff")
            a(f"s_add_u32 m0, s{sreg}, {n*1024}")
            a(f"s_add_u32 s{s.sT1}, s{s.sT0}, {(n//9)*64*1152}")
            a(f"buffer_load_dwordx4 v{140+n%9}, {srd}, s{s.sT1} offen lds")
        a("s_mov_b64 exec, -1")
    def wait_fl2(self, off, tag, extra_gate=False):
        a=self.a; s=self; L=f"{s.name}_w2{tag}"
        a(f"""
        s_and_b32 s{s.sT0}, s2, 7
        s_lshl_b32 s{s.sT0}, s{s.sT0}, 12
        s_add_u32 s{s.sT0}, s{s.sT0}, {off}
        v_and_b32 v{s.vT1}, 31, v{s.vLane}
        v_lshlrev_b32 v{s.vT1}, 7, v{s.vT1}
        s_mov_b32 s{s.sT3}, 0
        {L}:
        buffer_load_dword v{s.vT2}, v{s.vT1}, s[12:15], s{s.sT0} offen sc1
        s_waitcnt vmcnt(0)
        v_cmp_ne_u32 vcc, s47, v{s.vT2}
        s_nop 3
        s_cmp_eq_u64 vcc, 0
        s_cbranch_scc1 {L}_ok
        s_add_u32 s{s.sT3}, s{s.sT3}, 1
        s_cmp_lt_u32 s{s.sT3}, 0x40000
        s_cbranch_scc0 {L}_ok
        s_sleep 2
        s_branch {L}
        {L}_ok:
        """)
    def set_fl2(self, off):
        a=self.a; s=self
        a(f"""
        s_lshl_b32 s{s.sT0}, s{s.sQb}, 5
        s_add_u32 s{s.sT0}, s{s.sT0}, s{s.sHead}
        s_lshl_b32 s{s.sT0}, s{s.sT0}, 7
        s_add_u32 s{s.sT0}, s{s.sT0}, {off}
        v_mov_b32 v{s.vT0}, s47
        v_mov_b32 v{s.vT1}, 0
        s_mov_b64 exec, 1
        buffer_store_dword v{s.vT0}, v{s.vT1}, s[12:15], s{s.sT0} offen sc1
        s_mov_b64 exec, -1
        """)
    def read_flag(self):
        a=self.a; s=self
        b = s.vS[0]
        a(f"v_mov_b32 v{s.vT3}, {FLAGS}")
        a(f"ds_read_b128 {v(b,4)}, v{s.vT3}\nds_read_b128 {v(b+4,4)}, v{s.vT3} offset:16\ns_waitcnt lgkmcnt(0)")
        for i in range(1,8): a(f"v_or_b32 v{b}, v{b}, v{b+i}")
        a(f"s_nop 0\nv_readfirstlane_b32 s{s.sFlag}, v{b}\ns_nop 3\ns_cmp_eq_u32 s{s.sFlag}, 0")
    def compute_fallback(self):
        a=self.a; s=self; name=s.name
        vT0,vT1,vM,vS,vK1,vKR,vQ1,vQ2,vNM = s.vT0,s.vT1,s.vM,s.vS,s.vK1,s.vKR,s.vQ1,s.vQ2,s.vNM
        a(f"{name}_fb:")
        a("s_barrier")
        a(f"""
        v_mov_b32 v{vM[0]}, 0xff7fffff
        v_mov_b32 v{vM[1]}, 0xff7fffff
        v_mov_b32 v{vT0}, v{s.vOffQ}
        v_add_u32 v{vT1}, 8192, v{s.vL4}
        s_mov_b32 s{s.sT0}, 0
        {name}_fb_chunk:
        """)
        for t in range(8):
            a(f"ds_read_b128 {v(vK1[0],4)}, v{vT0} offset:{t*1024}")
            if t%2==0: a(f"ds_read2_b32 {v(vKR[0],2)}, v{vT1} offset0:{t*32} offset1:{t*32+32}")
            a("s_waitcnt lgkmcnt(0)")
            for q in range(2):
                a(f"v_mfma_f32_32x32x16_bf16 {v(vS[q],16)}, {v(vK1[0],4)}, {v(vQ1[q],4)}, 0")
                a(f"v_mfma_f32_32x32x8_bf16 {v(vS[q],16)}, {v(vKR[0],2)}, {v(vQ2[q]+2*(t&1),2)}, {v(vS[q],16)}")
            a("s_nop 15\ns_nop 3")
            for q in range(2):
                for j in range(0,16,2): a(f"v_max3_f32 v{vM[q]}, v{vM[q]}, v{vS[q]+j}, v{vS[q]+j+1}")
        a(f"""
        v_add_u32 v{vT0}, {CH}, v{vT0}
        v_add_u32 v{vT1}, {CH}, v{vT1}
        s_add_u32 s{s.sT0}, s{s.sT0}, 1
        s_cmp_lt_u32 s{s.sT0}, 8
        s_cbranch_scc1 {name}_fb_chunk
        v_mov_b32 v{vT0}, v{vM[0]}
        v_mov_b32 v{vT1}, v{vM[1]}
        s_nop 1
        v_permlane32_swap_b32 v{vM[0]}, v{vT0}
        v_permlane32_swap_b32 v{vM[1]}, v{vT1}
        s_nop 1
        v_max_f32 v{vM[0]}, v{vM[0]}, v{vT0}
        v_max_f32 v{vM[1]}, v{vM[1]}, v{vT1}
        """)
        for q in range(2):
            a(f"v_sub_f32 v{vNM[q]}, 0, v{vM[q]}")
            for i in range(1,16): a(f"v_mov_b32 v{vNM[q]+i}, v{vNM[q]}")
        a(f"s_branch {name}_fast")
    def norm_store(self, acc, offM, offR, eps, sM, sR, vGate=None):
        a=self.a; s=self
        vT0,vT1,vP = s.vT0,s.vT1,s.vP
        a(f"v_mov_b32 v{vT0}, v{acc+10}\nv_mov_b32 v{vT1}, v{acc+10}\ns_nop 1")
        a(f"v_permlane32_swap_b32 v{vT0}, v{vT1}\ns_nop 1")
        if eps: a(f"v_add_f32 v{vT0}, 0x358637bd, v{vT0}")
        a(f"v_rcp_f32 v{vT0}, v{vT0}\ns_nop 0")
        if vGate is not None: a(f"v_mul_f32 v{vT0}, v{vT0}, v{vGate}")
        for i in range(10): a(f"v_mul_f32 v{acc+i}, v{acc+i}, v{vT0}")
        for p in range(5): a(f"v_cvt_pk_bf16_f32 v{acc+p}, v{acc+2*p}, v{acc+2*p+1}")
        a(f"s_add_u32 s{s.sT0}, s{sM}, {offM}\ns_add_u32 s{s.sT1}, s{sR}, {offR}")
        a(f"buffer_store_dwordx4 {v(acc,4)}, v{s.vOffQ}, s[12:15], s{s.sT0} offen sc1")
        a(f"buffer_store_dword v{acc+4}, v{s.vOffR}, s[12:15], s{s.sT1} offen sc1")
    def wait_flags(self, branch, tag):
        a=self.a; s=self; L = f"{s.name}_wf{tag}"
        qi, ki, vi = ((0,32,0) if branch==0 else (64,32,64))
        kv8 = 0 if branch==0 else 8
        a(f"""
        s_add_u32 s{s.sT0}, s{s.sHead}, {qi}
        s_mul_i32 s{s.sT0}, s{s.sT0}, 5462
        s_lshr_b32 s{s.sT0}, s{s.sT0}, 16
        s_add_u32 s{s.sT1}, s{s.sHead}, {ki}
        s_mul_i32 s{s.sT1}, s{s.sT1}, 5462
        s_lshr_b32 s{s.sT1}, s{s.sT1}, 16
        s_add_u32 s{s.sT1}, s{s.sT1}, {kv8}
        s_add_u32 s{s.sT2}, s{s.sHead}, {vi}
        s_mul_i32 s{s.sT2}, s{s.sT2}, 5462
        s_lshr_b32 s{s.sT2}, s{s.sT2}, 16
        s_add_u32 s{s.sT2}, s{s.sT2}, 8
        v_lshrrev_b32 v{s.vT0}, 4, v{s.vLane}
        v_mov_b32 v{s.vT1}, s{s.sT0}
        v_mov_b32 v{s.vT2}, s{s.sT1}
        v_cmp_eq_u32 vcc, 1, v{s.vT0}
        s_nop 1
        v_cndmask_b32 v{s.vT1}, v{s.vT1}, v{s.vT2}, vcc
        v_mov_b32 v{s.vT2}, s{s.sT2}
        v_cmp_le_u32 vcc, 2, v{s.vT0}
        s_nop 1
        v_cndmask_b32 v{s.vT1}, v{s.vT1}, v{s.vT2}, vcc
        v_cmp_le_u32 vcc, 3, v{s.vT0}
        s_nop 1
        v_cndmask_b32 v{s.vT1}, v{s.vT1}, {'0' if branch==1 else 'v%d'%s.vT1}, vcc
        v_lshlrev_b32 v{s.vT1}, 11, v{s.vT1}
        v_and_b32 v{s.vT2}, 15, v{s.vLane}
        v_lshlrev_b32 v{s.vT2}, 7, v{s.vT2}
        v_add_u32 v{s.vT1}, v{s.vT1}, v{s.vT2}
        s_mov_b32 s{s.sT3}, 0
        s_mov_b32 s{s.sT0}, {OFF_FL}
        {L}:
        buffer_load_dword v{s.vT2}, v{s.vT1}, s[12:15], s{s.sT0} offen sc1
        s_waitcnt vmcnt(0)
        v_cmp_ne_u32 vcc, s47, v{s.vT2}
        s_nop 3
        s_cmp_eq_u64 vcc, 0
        s_cbranch_scc1 {L}_ok
        s_add_u32 s{s.sT3}, s{s.sT3}, 1
        s_cmp_lt_u32 s{s.sT3}, 0x40000
        s_cbranch_scc0 {L}_ok
        s_sleep 4
        s_branch {L}
        {L}_ok:
        """)
    def kv_dma(self, step):
        a=self.a; s=self
        for i in range(10):
            lo, hi = 4*i, 4*i+3
            if lo >= 38: break
            L=None
            if hi >= 38:
                L = a.uid("kd"); a(f"s_cmp_ge_u32 s{s.sW}, {38-lo}\ns_cbranch_scc1 {L}")
            base = lo*1024 + step*CH
            a(f"s_lshl_b32 s{s.sT0}, s{s.sW}, 10")
            if hi < 19: a(f"s_add_u32 s{s.sT0}, s{s.sT0}, {base}")
            elif lo >= 19: a(f"s_add_u32 s{s.sT0}, s{s.sT0}, {base + 4*CH - 19*1024}")
            else:
                a(f"s_cmp_ge_u32 s{s.sW}, {19-lo}\ns_cselect_b32 s{s.sT1}, {4*CH-19*1024}, 0\ns_add_u32 s{s.sT0}, s{s.sT0}, s{s.sT1}\ns_add_u32 s{s.sT0}, s{s.sT0}, {base}")
            a(f"s_mov_b32 m0, s{s.sT0}\ns_add_u32 s{s.sT0}, s{s.sT0}, s{s.sKVB}")
            a(f"buffer_load_dwordx4 v{s.vOffQ}, s[12:15], s{s.sT0} offen sc1 lds")
            if L: a(f"{L}:")
    def service_main(self):
        a=self.a; s=self; name=s.name
        vT0,vT1,vT2,vT3,vLane = s.vT0,s.vT1,s.vT2,s.vT3,s.vLane
        vKV = 68; vPK = 100
        vOffKV = 6
        a(f"""
        v_and_b32 v{vT1}, 31, v{vLane}
        v_lshrrev_b32 v{vT2}, 5, v{vLane}
        v_lshlrev_b32 v{vT0}, 4, v{vT1}
        v_mul_u32_u24 v{vOffKV}, 320, v{vT2}
        v_add_u32 v{vOffKV}, v{vOffKV}, v{vT0}
        v_cmp_gt_u32 vcc, 19, v{vT1}
        v_mov_b32 v{vT0}, {BIG}
        s_nop 0
        v_cndmask_b32 v{vOffKV}, v{vT0}, v{vOffKV}, vcc
        v_cmp_gt_u32 vcc, 32, v{vLane}
        s_nop 1
        v_cndmask_b32 v{s.vOffR}, v{vT0}, v{s.vL4}, vcc
        s_mul_i32 s{s.sKV}, s{s.sHead}, {128*640}
        s_mul_i32 s{s.sT0}, s{s.sW}, {32*640}
        s_add_u32 s{s.sKV}, s{s.sKV}, s{s.sT0}
        """)
        a(f"""
        s_lshl_b32 s{s.sT0}, s{s.sHead}, 13
        s_lshl_b32 s{s.sT1}, s{s.sW}, 11
        s_add_u32 s{s.sT0}, s{s.sT0}, s{s.sT1}
        s_add_u32 s{s.sT1}, s{s.sT0}, {OFF_KNR}
        s_add_u32 s{s.sT0}, s{s.sT0}, {OFF_KNM}
        buffer_load_dwordx4 v[12:15], v{s.vOffQ}, s[12:15], s{s.sT0} offen sc1
        buffer_load_dwordx4 v[16:19], v{s.vOffQ}, s[12:15], s{s.sT0} offen offset:1024 sc1
        buffer_load_dwordx4 v[20:23], v{s.vOffQ}, s[12:15], s{s.sT1} offen sc1
        buffer_load_dwordx4 v[24:27], v{s.vOffQ}, s[12:15], s{s.sT1} offen offset:1024 sc1
        """)
        s.kv_dma(0)
        a("""
        s_waitcnt vmcnt(9)
        v_max_u32 v12, v12, v13
        v_max_u32 v20, v20, v21
        v_max3_u32 v12, v12, v14, v15
        v_max3_u32 v20, v20, v22, v23
        v_max3_u32 v12, v12, v16, v17
        v_max3_u32 v20, v20, v24, v25
        v_max3_u32 v12, v12, v18, v19
        v_max3_u32 v20, v20, v26, v27
        s_nop 1
        """)
        for k in (1,2,4,8):
            a(f"v_max_u32_dpp v12, v12, v12 row_ror:{k} row_mask:0xf bank_mask:0xf")
            a(f"v_max_u32_dpp v20, v20, v20 row_ror:{k} row_mask:0xf bank_mask:0xf\ns_nop 0")
        a(f"""
        v_lshrrev_b32 v{vT0}, 4, v{vLane}
        s_lshl_b32 s{s.sT0}, s{s.sW}, 2
        v_add_u32 v{vT0}, s{s.sT0}, v{vT0}
        v_lshlrev_b32 v{vT0}, 3, v{vT0}
        v_add_u32 v{vT0}, {KCELL}, v{vT0}
        v_mov_b32 v13, v20
        ds_write_b64 v{vT0}, v[12:13]
        s_waitcnt lgkmcnt(0)
        s_barrier
        """)
        a("s_waitcnt vmcnt(0)\ns_barrier")
        s.kv_dma(1)
        s.read_flag()
        a(f"s_cbranch_scc0 {name}_sfb")
        a(f"{name}_sfast:")
        def kv_loads(g0, n):
            if "nokv" in s.dbg: return
            for g in range(n):
                a(f"s_add_u32 s{s.sT0}, s{s.sKV}, {OFF_PK + (g0+g)*640}")
                a(f"buffer_load_dwordx4 {v(vPK+8*g,4)}, v{vOffKV}, s[12:15], s{s.sT0} offen sc1")
                a(f"s_add_u32 s{s.sT0}, s{s.sKV}, {OFF_VA + (g0+g)*640}")
                a(f"buffer_load_dwordx4 {v(vPK+8*g+4,4)}, v{vOffKV}, s[12:15], s{s.sT0} offen sc1")
        def kv_mm(n, first):
            if "nokv" in s.dbg: return
            for g in range(n):
                C = "0" if (first and g==0) else v(vKV,16)
                a(f"v_mfma_f32_32x32x16_bf16 {v(vKV,16)}, {v(vPK+8*g,4)}, {v(vPK+8*g+4,4)}, {C}")
        s.wait_flags(1, "a")
        kv_loads(0, 8)
        s.kv_dma(2)
        a("s_waitcnt vmcnt(9)")
        kv_mm(8, True)
        kv_loads(8, 8)
        a("s_barrier")
        s.kv_dma(3)
        a("s_waitcnt vmcnt(9)")
        kv_mm(8, False)
        kv_loads(16, 8)
        a("s_waitcnt vmcnt(0)")
        kv_mm(8, False)
        kv_loads(24, 8)
        a(f"""
        s_lshl_b32 s{s.sQt}, s{s.sQb}, 3
        s_lshl_b32 s{s.sT0}, s{s.sW}, 1
        s_add_u32 s{s.sQt}, s{s.sQt}, s{s.sT0}
        s_lshl_b32 s{s.sT0}, s{s.sHead}, 6
        s_add_u32 s{s.sT0}, s{s.sT0}, s{s.sQt}
        s_lshl_b32 s{s.sOM}, s{s.sT0}, 10
        s_lshl_b32 s{s.sOR}, s{s.sT0}, 7
        s_add_u32 s{s.sT0}, s{s.sOM}, {OFF_PQM}
        s_add_u32 s{s.sT1}, s{s.sOR}, {OFF_PQR}
        buffer_load_dwordx4 v[12:15], v{s.vOffQ}, s[12:15], s{s.sT0} offen sc1
        buffer_load_dwordx4 v[16:19], v{s.vOffQ}, s[12:15], s{s.sT0} offen offset:1024 sc1
        buffer_load_dword v20, v{s.vL4}, s[12:15], s{s.sT1} offen sc1
        buffer_load_dword v22, v{s.vL4}, s[12:15], s{s.sT1} offen offset:128 sc1
        s_lshl_b32 s{s.sT0}, s{s.sQt}, 7
        s_add_u32 s{s.sT0}, s{s.sT0}, {OFF_G}
        buffer_load_dword v30, v{s.vL4}, s[12:15], s{s.sT0} offen sc1
        buffer_load_dword v31, v{s.vL4}, s[12:15], s{s.sT0} offen offset:128 sc1
        s_waitcnt vmcnt(0)
        """)
        kv_mm(8, False)
        a(f"""
        v_and_b32 v{vT1}, 31, v{vLane}
        v_lshrrev_b32 v{vT2}, 5, v{vLane}
        v_mul_u32_u24 v{vT2}, 20, v{vT2}
        v_add_u32 v{vT2}, v{vT2}, v{vT1}
        v_mul_u32_u24 v7, 48, v{vT2}
        v_add_u32 v7, {KVP}, v7
        v_cmp_gt_u32 vcc, 20, v{vT1}
        v_mov_b32 v{vT0}, 0x10000000
        s_mul_i32 s{s.sT0}, s{s.sW}, 1920
        v_cndmask_b32 v7, v{vT0}, v7, vcc
        v_add_u32 v{vT0}, s{s.sT0}, v7
        s_nop 7
        s_nop 3
        """)
        for qd in range(3): a(f"ds_write_b128 v{vT0}, {v(vKV+4*qd,4)} offset:{16*qd}")
        a("s_waitcnt lgkmcnt(0)\ns_barrier")
        for qd in range(3):
            for w in range(4): a(f"ds_read_b128 {v(vPK+16*qd+4*w,4)}, v7 offset:{w*1920+qd*16}")
        a("s_waitcnt lgkmcnt(0)")
        for qd in range(3):
            b = vPK+16*qd
            for i in range(4):
                a(f"v_add_f32 v{b+i}, v{b+i}, v{b+4+i}")
                a(f"v_add_f32 v{b+8+i}, v{b+8+i}, v{b+12+i}")
            for i in range(4): a(f"v_add_f32 v{vKV+4*qd+i}, v{b+i}, v{b+8+i}")
        for p in range(4): a(f"v_cvt_pk_bf16_f32 v{24+p}, v{vKV+2*p}, v{vKV+2*p+1}")
        a(f"""
        v_cvt_pk_bf16_f32 v{vT0}, v{vKV+8}, v{vKV+9}
        v_cmp_gt_u32 vcc, 32, v{vLane}
        v_mov_b32 v29, 0
        v_mov_b32 v21, 0
        v_mov_b32 v23, 0
        v_cndmask_b32 v28, 0, v{vT0}, vcc
        v_cndmask_b32 v20, 0, v20, vcc
        v_cndmask_b32 v22, 0, v22, vcc
        s_nop 1
        v_mfma_f32_32x32x16_bf16 v[100:115], v[24:27], v[12:15], 0
        v_mfma_f32_32x32x16_bf16 v[116:131], v[24:27], v[16:19], 0
        v_mfma_f32_32x32x8_bf16 v[100:115], v[28:29], v[20:21], v[100:115]
        v_mfma_f32_32x32x8_bf16 v[116:131], v[28:29], v[22:23], v[116:131]
        s_nop 15
        s_nop 3
        """)
        s.norm_store(100, OFF_OAM, OFF_OAR, True, s.sOM, s.sOR, 30 if s.full else None)
        a(f"s_add_u32 s{s.sOM}, s{s.sOM}, 1024\ns_add_u32 s{s.sOR}, s{s.sOR}, 128")
        s.norm_store(116, OFF_OAM, OFF_OAR, True, s.sOM, s.sOR, 31 if s.full else None)
        if s.full:
            s.p45_ids()
            s.w_patterns()
            a(f"""
            s_and_b32 s{s.sT2}, s{s.sW}, 1
            s_mul_i32 s{s.sT2}, s{s.sT2}, {WQ[1]}
            s_lshr_b32 s{s.sT3}, s{s.sW}, 1
            s_mul_i32 s{s.sT3}, s{s.sT3}, {WQ[2]}
            s_add_u32 s74, s{s.sT2}, s{s.sT3}
            """)
        a("s_waitcnt vmcnt(0)")
        a("s_barrier")
        if s.full:
            L = a.uid("sv")
            a(f"s_cmp_lg_u32 s{s.sW}, 0\ns_cbranch_scc1 {L}")
            s.set_fl2(OFF_FL2A)
            a(f"{L}:")
            L = a.uid("sv")
            a(f"s_cmp_gt_u32 s{s.sW}, 1\ns_cbranch_scc1 {L}")
            s.w_quarter_dma("s[84:87]", s.sW, 74)
            a(f"{L}:")
            s.wait_fl2(OFF_FL2A, "a")
        a("s_barrier")
        if s.full:
            L = a.uid("sv")
            a(f"s_cmp_lt_u32 s{s.sW}, 2\ns_cbranch_scc1 {L}")
            s.w_quarter_dma("s[84:87]", s.sW, 74)
            a(f"{L}:")
        a("s_barrier")
        if s.full: a("s_waitcnt vmcnt(0)")
        a("s_barrier")
        a("s_barrier")
        if s.full:
            L = a.uid("sv")
            a(f"s_cmp_lg_u32 s{s.sW}, 0\ns_cbranch_scc1 {L}")
            s.set_fl2(OFF_FL2B)
            a(f"{L}:")
            s.w_quarter_dma("s[96:99]", s.sW, 74)
            s.wait_fl2(OFF_FL2B, "b")
            a("s_barrier")
            a("s_barrier")
            a("s_barrier")
    def service_fallback(self):
        a=self.a; s=self; name=s.name
        a(f"{name}_sfb:")
        s.kv_dma(2); s.kv_dma(3)
        a("s_waitcnt vmcnt(0)\ns_barrier")
        a(f"s_branch {name}_sfast")
def prefetch(a, q, name, code_kb=56):
    vT0,vT1,vT2,vLane = q.vT0,q.vT1,q.vT2,q.vLane
    D = 160
    a(f"""
    s_getpc_b64 s[76:77]
    {name}_pc:
    s_sub_u32 s76, s76, {name}_pc-{name}
    s_subb_u32 s77, s77, 0
    s_lshl_b32 s{q.sT0}, s{q.sW}, 13
    v_lshlrev_b32 v{vT0}, 7, v{vLane}
    v_add_u32 v{vT0}, s{q.sT0}, v{vT0}
    v_min_u32 v{vT0}, {name}_end-{name}, v{vT0}
    global_load_dword v{D}, v{vT0}, s[76:77]
    """)
    a(f"""
    s_cmp_eq_u32 s{q.sMat1}, 0
    s_cselect_b32 s72, s{q.sWB}, s{q.sWA}
    s_cselect_b32 s73, s{q.sWB+1}, s{q.sWA+1}
    s_mov_b32 s74, {576*3456}
    s_mov_b32 s75, 0x00020000
    s_cmp_gt_u32 s{q.sW}, 3
    s_cbranch_scc1 {name}_pfx
    s_lshl_b32 s{q.sT0}, s{q.sW}, 6
    v_add_u32 v{vT0}, s{q.sT0}, v{vLane}
    v_mul_u32_u24 v{vT1}, 13108, v{vT0}
    v_lshrrev_b32 v{vT1}, 16, v{vT1}            ; t/5
    v_mul_u32_u24 v{vT2}, 5, v{vT1}
    v_sub_u32 v{vT2}, v{vT0}, v{vT2}            ; t%5
    v_lshlrev_b32 v{vT2}, 7, v{vT2}
    v_min_u32 v{vT2}, 448, v{vT2}
    v_lshlrev_b32 v{vT1}, 3, v{vT1}
    s_and_b32 s{q.sT0}, s{q.sR}, 7
    s_add_u32 s{q.sT0}, s{q.sT0}, 192
    v_add_u32 v{vT1}, s{q.sT0}, v{vT1}
    v_mul_u32_u24 v{vT1}, 3456, v{vT1}
    v_add_u32 v{vT1}, v{vT1}, v{vT2}
    s_andn2_b32 s{q.sT0}, s{q.sS1}, 63
    buffer_load_dword v{D+1}, v{vT1}, s[72:75], s{q.sT0} offen
    s_branch {name}_pfd
    {name}_pfx:
    s_cmp_eq_u32 s{q.sW}, 7
    s_cbranch_scc1 {name}_pfw
    s_sub_u32 s{q.sT0}, s{q.sW}, 4
    s_lshl_b32 s{q.sT0}, s{q.sT0}, 6
    v_add_u32 v{vT0}, s{q.sT0}, v{vLane}
    v_mul_u32_u24 v{vT1}, 10923, v{vT0}
    v_lshrrev_b32 v{vT1}, 16, v{vT1}            ; t/6
    v_mul_u32_u24 v{vT2}, 6, v{vT1}
    v_sub_u32 v{vT2}, v{vT0}, v{vT2}
    v_add_u32 v{vT2}, 3, v{vT2}
    v_lshlrev_b32 v{vT2}, 7, v{vT2}
    s_and_b32 s{q.sT0}, s{q.sJt}, 3
    s_lshl_b32 s{q.sT0}, s{q.sT0}, 5
    s_lshl_b32 s{q.sT1}, s{q.sR}, 7
    s_add_u32 s{q.sT0}, s{q.sT0}, s{q.sT1}
    v_add_u32 v{vT1}, s{q.sT0}, v{vT1}
    v_mul_u32_u24 v{vT1}, 1152, v{vT1}
    v_add_u32 v{vT1}, v{vT1}, v{vT2}
    buffer_load_dword v{D+1}, v{vT1}, s[8:11], 0 offen
    s_branch {name}_pfd
    {name}_pfw:
    v_lshlrev_b32 v{vT1}, 21, v{vLane}
    buffer_load_dword v{D+1}, v{vT1}, s[12:15], 0 offen
    {name}_pfd:
    """)
def gen_f1(name="f1_kernel", stamps=False, dbg="", full=False):
    a = Asm()
    q = QKVF(a, name, "sc1")
    t = ATT(a, name); t.stamps = stamps; t.dbg = dbg; t.full = full
    def stamp(i):
        if stamps: a(f"s_memtime s[52:53]\ns_waitcnt lgkmcnt(0)\nv_writelane_b32 v167, s52, {i}")
    t.stamp = stamp; q.stamp = stamp
    a(f"""
    s_cmp_ge_u32 s2, 256
    s_cbranch_scc1 {name}_end
    s_load_dwordx2 s[8:9], s[0:1], 0
    s_load_dwordx2 s[16:17], s[0:1], 8
    s_load_dwordx2 s[18:19], s[0:1], 32
    s_load_dwordx2 s[4:5], s[0:1], 48
    s_load_dwordx2 s[92:93], s[0:1], 64
    s_load_dwordx2 s[12:13], s[0:1], 72
    s_load_dwordx2 s[84:85], s[0:1], 16
    s_load_dwordx2 s[96:97], s[0:1], 40
    s_load_dwordx2 s[88:89], s[0:1], 56
    s_memtime s[50:51]
    s_memrealtime s[66:67]
    s_mov_b32 s86, {576*576*2}
    s_mov_b32 s87, 0x00020000
    s_mov_b32 s98, {576*576*2}
    s_mov_b32 s99, 0x00020000
    s_mov_b32 s90, {S*D*2}
    s_mov_b32 s91, 0x00020000
    s_mov_b32 s10, {S*D*2}
    s_mov_b32 s11, 0x00020000
    s_mov_b32 s14, {WS_END}
    s_mov_b32 s15, 0x00020000
    s_mov_b32 s6, 1152
    s_mov_b32 s7, 0x00020000
    s_mov_b32 s94, 256
    s_mov_b32 s95, 0x00020000
    """)
    q.setup()
    a(f"s_cmp_lt_u32 s{q.sW}, 8\ns_cbranch_scc1 {name}_comp")
    a("s_setprio 1")
    a(f"s_sub_u32 s{q.sW}, s{q.sW}, 8")
    q.loader_x_setup()
    a("s_waitcnt lgkmcnt(0)")
    a(f"""
    s_cmp_lg_u32 s2, 0
    s_cbranch_scc1 {name}_nonce1
    s_cmp_lg_u32 s{q.sW}, 0
    s_cbranch_scc1 {name}_nonce1
    s_memrealtime s[80:81]
    s_waitcnt lgkmcnt(0)
    s_or_b32 s80, s80, 1
    v_mov_b32 v2, s80
    v_mov_b32 v3, 0
    s_mov_b64 exec, 1
    buffer_store_dword v2, v3, s[92:95], 0 offen sc1
    s_mov_b64 exec, -1
    {name}_nonce1:
    """)
    q.loader4(name+"_ld", name+"_svc2")
    a(f"{name}_svc2:")
    a(f"s_mov_b32 s46, s{q.sJt}\ns_mov_b32 s48, s{q.sR}")
    t.ids()
    a(f"""
    v_mov_b32 v3, 0
    s_mov_b32 s30, 0
    {name}_npoll:
    buffer_load_dword v2, v3, s[92:95], 0 offen sc1
    s_waitcnt vmcnt(0)
    v_readfirstlane_b32 s47, v2
    s_nop 3
    s_cmp_lg_u32 s47, 0
    s_cbranch_scc1 {name}_ndone
    s_add_u32 s30, s30, 1
    s_cmp_lt_u32 s30, 0x40000
    s_cbranch_scc0 {name}_ndone
    s_sleep 8
    s_branch {name}_npoll
    {name}_ndone:
    """)
    a("s_barrier")
    a("s_barrier")
    a(f"""
    s_cmp_lg_u32 s{q.sW}, 0
    s_cbranch_scc1 {name}_nopoll
    v_mov_b32 v2, s47
    s_lshl_b32 s29, s46, 4
    s_add_u32 s29, s29, s48
    s_lshl_b32 s29, s29, 7
    s_add_u32 s29, s29, {OFF_FL}
    v_mov_b32 v3, 0
    s_mov_b64 exec, 1
    buffer_store_dword v2, v3, s[12:15], s29 offen sc1
    s_mov_b64 exec, -1
    """)
    t.wait_flags(0, "b")
    a(f"{name}_nopoll:\ns_barrier")
    t.service_main()
    a("s_endpgm")
    t.service_fallback()
    a(f"{name}_comp:\ns_waitcnt lgkmcnt(0)")
    if "nopf" not in dbg: prefetch(a, q, name)
    q.read_addrs()
    for i in range(64): a(f"v_mov_b32 v{q.vD+i}, 0")
    a(f"""
    s_lshl_b32 s{q.sT0}, s{q.sIsV}, 1
    s_add_u32 s{q.sT0}, s{q.sT0}, s{q.sCh}
    s_cmp_eq_u32 s{q.sT0}, 1
    s_cbranch_scc1 {name}_v01
    s_cmp_eq_u32 s{q.sT0}, 2
    s_cbranch_scc1 {name}_v10
    s_cmp_eq_u32 s{q.sT0}, 3
    s_cbranch_scc1 {name}_v11
    """)
    for (isv,ch) in ((0,0),(0,1),(1,0),(1,1)):
        if (isv,ch) != (0,0): a(f"{name}_v{isv}{ch}:")
        q.gemm3(isv, ch, f"{name}_g{isv}{ch}")
        stamp(3)
        if isv: q.v_consts()
        (q.v_epilogue if isv else q.q_epilogue)(f"{name}_e{isv}{ch}", ch)
        if (isv,ch) != (1,1): a(f"s_branch {name}_c2")
    a(f"{name}_c2:")
    stamp(4)
    t.compute_pre()
    a("s_waitcnt vmcnt(0)")
    stamp(5)
    a("s_barrier")
    stamp(6)
    a("s_barrier")
    stamp(7)
    t.compute_main()
    if stamps:
        a("s_waitcnt vmcnt(0)")
        stamp(14)
        a("s_memrealtime s[68:69]\ns_waitcnt lgkmcnt(0)")
        a("v_writelane_b32 v167, s50, 0\nv_writelane_b32 v167, s66, 1\nv_writelane_b32 v167, s68, 15")
        a("s_lshl_b32 s28, s2, 3\ns_add_u32 s28, s28, s24\ns_lshl_b32 s28, s28, 6\ns_add_u32 s28, s28, 0x2000000\ns_mov_b32 s14, 0x4000000")
        a("v_and_b32 v2, 63, v0\nv_lshlrev_b32 v3, 2, v2\nv_cmp_gt_u32 vcc, 16, v2\nv_mov_b32 v4, 0x7f000000\ns_nop 0\nv_cndmask_b32 v3, v4, v3, vcc")
        a("buffer_store_dword v167, v3, s[12:15], s28 offen")
    a("s_endpgm")
    t.compute_fallback()
    a(f"{name}_end:\ns_endpgm")
    return kernel_head(name) + a.text() + kernel_desc(name, 168, sgpr=100)
```

```python
import numpy as np
S=2048; D=576; H=32; DH=18
def bf16(x):
    x = np.ascontiguousarray(x, np.float32)
    u = x.view(np.uint32)
    return ((u + 0x7fff + ((u>>16)&1))>>16).astype(np.uint16)
def unbf16(u):
    return (np.ascontiguousarray(u,np.uint16).astype(np.uint32)<<16).view(np.float32)
def rb(x): return unbf16(bf16(x))
CH = 19456
OFF_QBM = 0
OFF_QBR = OFF_QBM + 32*64*1024
OFF_KVB = OFF_QBR + 32*2048*4
OFF_PQM = OFF_KVB + 32*8*CH
OFF_PQR = OFF_PQM + 32*64*1024
OFF_PK  = OFF_PQR + 32*2048*4
OFF_VA  = OFF_PK + 32*128*640 + 1024
OFF_KM  = OFF_VA + 32*128*640 + 1024
OFF_G   = OFF_KM + 32*64*2*4
OFF_OAM = OFF_G + 2048*4
OFF_OAR = OFF_OAM + 32*64*1024
OFF_OBM = OFF_OAR + 32*2048*4
OFF_OBR = OFF_OBM + 32*64*1024
OFF_KNM = OFF_OBR + 32*2048*4
OFF_KNR = OFF_KNM + 32*2048*4
OFF_FL  = (OFF_KNR + 32*2048*4 + 4095)//4096*4096
FLS = 128
OFF_FL2B = OFF_FL + 256*FLS
OFF_FL2A = OFF_FL2B + 256*FLS
WS_END  = OFF_FL2A + 256*FLS + 1024
def md(h): return list(range(16)) if h%2==0 else list(range(2,18))
def rd(h): return [16,17] if h%2==0 else [0,1]
def mi(hf,j): return 4*hf+j if j<4 else 8+4*hf+(j-4)
MI = np.array([[mi(hf,j) for j in range(8)] for hf in range(2)])
def rho_dims(h): return md(h)+rd(h)
QSCALE = np.float32(np.log2(np.e)/np.sqrt(18.0))
def qtype_main(t):
    out = np.zeros((H,64,64,8),np.uint16)
    tb = bf16(t)
    for h in range(H):
        m = np.array(md(h))
        for hf in range(2):
            out[h,:,hf*32:(hf+1)*32,:] = tb[:,h,:][:, m[MI[hf]]].reshape(64,32,8)
    return out
def qtype_rem(t):
    out = np.zeros((H,S,2),np.uint16)
    tb = bf16(t)
    for h in range(H):
        out[h] = tb[:,h,:][:, rd(h)]
    return out
def vtype(t, ones):
    out = np.zeros((H,128,2,20,8),np.uint16)
    tb = bf16(t)
    for h in range(H):
        rr = rho_dims(h)
        tt = tb[:,h,:][:, rr]
        tt = tt.reshape(128,16,18)
        for hf in range(2):
            out[h,:,hf,:18,:] = tt[:, MI[hf], :].transpose(0,2,1)
        if ones: out[h,:,:,18,:] = 0x3f80
    return out
def phi(t):
    return np.where(t>0, t+1, np.exp(np.minimum(t,0))) + 1e-6
def compute_qkv(x, w):
    y = x @ w
    y = y.reshape(S,3,H,DH)
    return y[:,0], y[:,1], y[:,2]
def build_ws(x, wA, wB, gw):
    ws = np.zeros(WS_END, np.uint8)
    def put(off, arr):
        b = np.ascontiguousarray(arr).view(np.uint8).ravel(); ws[off:off+b.size] = b
    qB,kB,vB = compute_qkv(x,wB); qA,kA,vA = compute_qkv(x,wA)
    put(OFF_QBM, qtype_main(qB*QSCALE)); put(OFF_QBR, qtype_rem(qB*QSCALE))
    km = qtype_main(kB); kr = qtype_rem(kB); vv = vtype(vB, True)
    kvb = np.zeros((H,8,CH),np.uint8)
    for h in range(H):
        for c in range(8):
            kvb[h,c,:8192] = km[h,8*c:8*c+8].view(np.uint8).ravel()
            kvb[h,c,8192:9216] = kr[h,256*c:256*(c+1)].view(np.uint8).ravel()
            kvb[h,c,9216:] = vv[h,16*c:16*c+16].view(np.uint8).ravel()
    put(OFF_KVB, kvb)
    pq = phi(qA); pk = phi(kA)
    put(OFF_PQM, qtype_main(pq)); put(OFF_PQR, qtype_rem(pq))
    put(OFF_PK, vtype(pk, False)); put(OFF_VA, vtype(vA, True))
    kmx = np.zeros((H,64,2),np.float32)
    for h in range(H):
        kk = kB[:,h,:]
        kmx[h,:,0] = (kk[:,md(h)]**2).sum(1).reshape(64,32).max(1)
        kmx[h,:,1] = (kk[:,rd(h)]**2).sum(1).reshape(64,32).max(1)
    put(OFF_KM, kmx)
    z = x @ gw
    g = 1/(1+np.exp(-z))
    put(OFF_G, g.astype(np.float32))
    return ws, dict(qB=qB,kB=kB,vB=vB,qA=qA,kA=kA,vA=vA,g=g,pq=pq,pk=pk)
def o_layout(o):
    return qtype_main(o), qtype_rem(o)
def o_from_layout(m, r):
    o = np.zeros((S,H,DH),np.float32)
    m = unbf16(m).reshape(H,64,64,8); r = unbf16(r).reshape(H,S,2)
    for h in range(H):
        mm = np.array(md(h))
        for hf in range(2):
            o[:,h,mm[MI[hf]]] = m[h,:,hf*32:(hf+1)*32,:].reshape(S,8)
        o[:,h,rd(h)] = r[h]
    return o
def attn_ref(q,k,v):
    o = np.zeros((S,H,DH),np.float32)
    for h in range(H):
        s = (q[:,h,:] @ k[:,h,:].T) * np.float32(18**-0.5)
        s -= s.max(1,keepdims=True)
        p = np.exp(s); p /= p.sum(1,keepdims=True)
        o[:,h,:] = p @ v[:,h,:]
    return o
def lin_ref(pq,pk,v):
    o = np.zeros((S,H,DH),np.float32)
    for h in range(H):
        kv = pk[:,h,:].T @ v[:,h,:]; z = pk[:,h,:].sum(0)
        o[:,h,:] = (pq[:,h,:]@kv)/((pq[:,h,:]@z)[:,None]+1e-6)
    return o
def wo_rowmap_main(h):
    m = np.array(md(h)); return 18*h + m[MI]
if __name__=="__main__":
    print("WS_END", WS_END, hex(WS_END))
    for n in ("OFF_QBM","OFF_QBR","OFF_KVB","OFF_PQM","OFF_PQR","OFF_PK","OFF_VA","OFF_KM","OFF_G","OFF_OAM","OFF_OAR","OFF_OBM","OFF_OBR"):
        print(n, globals()[n], hex(globals()[n]))
```

```python
import sys
sys.path.insert(0,'dev')
from fused import gen_f1, LDS_F
ref = open('gated_mix__linear_attn_block__mha_block__prompt.s.ref').read().split("\n")
hdr = [l for l in ref if l.startswith(";") and "@launch" not in l and "Override" not in l and "grid=ceil" not in l][:12]
def build(path, stamps=False, dbg=""):
    src = "\n".join(hdr) + f"""
; @launch kernel=f2_kernel grid=(256,1,1) block=(768,1,1) lds={LDS_F}
.amdgcn_target "amdgcn-amd-amdhsa--gfx950"
.text
""" + gen_f1(name="f2_kernel", stamps=stamps, dbg=dbg, full=True)
    open(path,"w").write(src)
if __name__=="__main__":
    build("f2.s"); build("f2_stamps.s", stamps=True); build("f2_pc.s", dbg="pfcode"); build("f2_pw.s", dbg="pfws"); build("f2_pcw.s", dbg="pfcode_pfws")
```

```python
from asmlib import *
from model import *
from k1d import QKV, SLOT, BIG, HS_KVB, HS_V, QSC, LOG2E, EPS
LDS_F = 163840
import os
STAMPS = os.environ.get('STAMPS', 'start,rt0,gemm_end,flags,BA0,loop_end,BE0,BE1,OBst,BE2,BA,BF,BR0,BR1,end,rt1').split(',')
NSV = 4
FLAGS = 8*CH
KCELL = FLAGS + 64
SCELL = FLAGS + 256
OXCH = 41472
GCELL = 119296
WQ = [0, 77824, 20736, 98560]
WQB = [120320, 141056, 41472, 0]
KVP = FLAGS + 512
C1 = 0
C2B = 16
C2A = 24
class QKVF(QKV):
    def loader_x_setup(self):
        a=self.a; s=self
        a(f"""
        v_lshrrev_b32 v{s.vT0}, 3, v{s.vLane}
        s_lshl_b32 s{s.sT0}, s{s.sW}, 3
        v_add_u32 v{s.vT0}, s{s.sT0}, v{s.vT0}
        v_lshrrev_b32 v{s.vT1}, 1, v{s.vT0}
        v_and_b32 v{s.vT1}, 7, v{s.vT1}
        v_and_b32 v{s.vT2}, 7, v{s.vLane}
        v_xor_b32 v{s.vT1}, v{s.vT1}, v{s.vT2}
        v_lshlrev_b32 v{s.vT1}, 4, v{s.vT1}
        s_lshl_b32 s{s.sT0}, s{s.sR}, 7
        v_add_u32 v{s.vT0}, s{s.sT0}, v{s.vT0}
        v_mul_u32_u24 v{s.vT0}, 1152, v{s.vT0}
        v_add_u32 v{s.vXG}, v{s.vT0}, v{s.vT1}
        s_lshl_b32 s{s.sM}, s{s.sW}, 10
        """)
    def chunk4(self, slot, c, far):
        a=self.a; s=self
        a(f"s_mov_b64 exec, s[{s.sMask}:{s.sMask+1}]")
        for k in range(8):
            a(f"s_add_u32 m0, s{s.sM}, {slot + k*4096}")
            if far:
                a("s_nop 0")
                a(f"global_load_lds_dwordx4 {v(s.vWG,2)}, off")
                a(f"v_lshl_add_u64 {v(s.vWG,2)}, {v(s.vWG,2)}, 0, s[72:73]")
            else:
                a(f"s_mov_b32 s{s.sT0}, {(c*64 + 8*k)*3456}")
                a(f"buffer_load_dwordx4 v{s.vWG}, s[72:75], s{s.sT0} offen lds")
        a("s_mov_b64 exec, -1")
        for k in range(4):
            a(f"s_add_u32 m0, s{s.sM}, {slot + 32768 + k*4096}")
            a(f"s_mov_b32 s{s.sT0}, {c*128 + k*32*1152}")
            a(f"buffer_load_dwordx4 v{s.vXG}, s[8:11], s{s.sT0} offen lds")
    def loader4(self, lbl, done_label):
        a=self.a; s=self
        n = 12
        for far in (False, True):
            if far:
                a(f"{lbl}_far:")
                s.setup_w()
                a(f"s_mov_b32 s72, {8*3456}\ns_mov_b32 s73, 0")
            else:
                s.loader_setup_w(lbl)
            s.chunk4(0, 0, far)
            a(f"v_lshlrev_b32 v{s.vT0}, 1, v{s.vLane}")
            for c in range(9): a(f"buffer_load_ushort v{s.vD+c}, v{s.vT0}, s[4:7], 0 offen offset:{128*c}")
            s.chunk4(SLOT, 1, far)
            a(f"s_waitcnt vmcnt({n})")
            for c in range(3): s.loader_gate(c*SLOT, c)
            a("s_waitcnt lgkmcnt(0)\ns_barrier")
            s.chunk4(2*SLOT, 2, far)
            for G in range(8):
                nout = n if G+2 <= 8 else 0
                a(f"s_waitcnt vmcnt({nout}) lgkmcnt(0)\ns_barrier")
                if G+3 <= 8:
                    s.loader_gate((G%3)*SLOT, G+3)
                    s.chunk4((G%3)*SLOT, G+3, far)
            a("s_barrier")
            if not far: a(f"s_branch {done_label}")
    def gemm3(self, isv, ch, lbl):
        a=self.a; s=self
        ntile = 4 if ch==0 else 3
        nr = 1 + 2*ntile
        def reads(st, b):
            a(f"ds_read_b128 {v(s.vXF[b],4)}, v{s.vXR[st]}")
            for tl in range(ntile):
                for u in range(2):
                    a(f"ds_read_b64_tr_b16 {v(s.vWF[b]+4*tl+2*u,2)}, v{s.vWR[tl]} offset:{(16*st+4*u)*512}")
        def mm(b):
            for tl in range(ntile):
                X, W = v(s.vXF[b],4), v(s.vWF[b]+4*tl,4)
                A,B = (X,W) if isv else (W,X)
                a(f"v_mfma_f32_32x32x16_bf16 {v(s.vD+16*tl,16)}, {A}, {B}, {v(s.vD+16*tl,16)}")
        a("s_barrier")
        s.stamp('bar0')
        reads(0,0)
        a(f"s_mov_b32 s{s.sC}, 0")
        a(f"{lbl}_loop:")
        for j in range(3):
            for st in range(3):
                reads(st+1, (st+1)&1)
                a(f"s_waitcnt lgkmcnt({nr})")
                mm(st&1)
            a("s_waitcnt lgkmcnt(0)")
            if j == 2:
                a(f"s_cmp_eq_u32 s{s.sC}, 2\ns_cbranch_scc1 {lbl}_last")
            a("s_barrier")
            d = SLOT if j < 2 else -2*SLOT
            for r in s.vWR[:ntile]+s.vXR: a(f"v_add_u32 v{r}, {d & 0xffffffff}, v{r}")
            reads(0, 0)
            if j == 2: a(f"s_add_u32 s{s.sC}, s{s.sC}, 1")
            mm(1)
        a(f"s_branch {lbl}_loop")
        a(f"{lbl}_last:")
        a("s_barrier")
        mm(1)
        a("s_nop 15\ns_nop 3")

    def phi8(self, regs, tmp):
        a=self.a
        n=len(regs); r0=regs[0]
        assert regs == list(range(r0, r0+n)) and r0%2==0 and tmp%2==0 and n%2==0
        for i in range(0,n,2): a(f"v_pk_mul_f32 {v(tmp+i,2)}, {v(r0+i,2)}, s[78:79]")
        for i in range(n): a(f"v_exp_f32_e64 v{tmp+i}, v{tmp+i} clamp")
        for i in range(n): a(f"v_max_f32 v{r0+i}, 0, v{r0+i}")
        for i in range(0,n,2): a(f"v_pk_add_f32 {v(tmp+i,2)}, {v(tmp+i,2)}, s[76:77]")
        for i in range(0,n,2): a(f"v_pk_add_f32 {v(r0+i,2)}, {v(r0+i,2)}, {v(tmp+i,2)}")
    def phi_consts(self):
        self.a(f"s_mov_b32 s78, {LOG2E}\ns_mov_b32 s79, {LOG2E}\ns_mov_b32 s76, {EPS}\ns_mov_b32 s77, {EPS}")
    def phi_regs(self, regs, tmp): self.phi8(regs, tmp)
    def q_slice(self, b, sl, lbl):
        a=self.a; s=self; E=s.vE
        L = a.uid(lbl+"_s")
        s.list_kind(sl)
        a(f"""
        s_lshl_b32 s{s.sT0}, s{s.sHead}, 6
        s_add_u32 s{s.sT4}, s{s.sT0}, s{s.sT32}          ; head*64 + t32
        s_cmp_eq_u32 s{s.sKind}, 1
        s_cbranch_scc1 {L}_k
        s_cmp_eq_u32 s{s.sKind}, 2
        s_cbranch_scc1 {L}_phi
        """)
        for i in range(8): a(f"v_mul_f32 v{b+i}, {QSC}, v{b+i}")
        a(f"s_lshl_b32 s{s.sBase}, s{s.sT4}, 10\ns_add_u32 s{s.sBase}, s{s.sBase}, {OFF_QBM}\ns_branch {L}_st\n{L}_phi:")
        s.phi8([b+i for i in range(8)], E)
        a(f"s_lshl_b32 s{s.sBase}, s{s.sT4}, 10\ns_add_u32 s{s.sBase}, s{s.sBase}, {OFF_PQM}\ns_branch {L}_st\n{L}_k:")
        a(f"v_mul_f32 v{E}, v{b}, v{b}")
        for i in range(1,8): a(f"v_fmac_f32 v{E}, v{b+i}, v{b+i}")
        a(f"""
        v_mov_b32 v{E+2}, v{E}
        s_lshl_b32 s{s.sT1}, s{s.sT4}, 7
        s_add_u32 s{s.sT1}, s{s.sT1}, {OFF_KNM}
        v_permlane32_swap_b32 v{E}, v{E+2}
        s_mul_i32 s{s.sBase}, s{s.sHead}, {HS_KVB}
        s_add_u32 s{s.sBase}, s{s.sBase}, s{s.sKoff}
        v_add_f32 v{E}, v{E}, v{E+2}
        """)
        s.st(f"buffer_store_dword v{E}, v{s.vT5}, s[12:15], s{s.sT1} offen")
        a(f"{L}_st:")
        for i in range(4): a(f"v_cvt_pk_bf16_f32 v{b+i}, v{b+2*i}, v{b+2*i+1}")
        s.st(f"buffer_store_dwordx4 {v(b,4)}, v{s.vL16}, s[12:15], s{s.sBase} offen")
    def q_epilogue(self, lbl, ch):
        a=self.a; s=self; E=s.vE; vD=s.vD
        ntile = 4 if ch==0 else 2
        s.sKoff = 80; s.sKRoff = 81
        a(f"""
        v_cmp_gt_u32 vcc, 32, v{s.vLane}
        v_mov_b32 v{s.vT5}, {BIG}
        s_lshr_b32 s{s.sT0}, s{s.sT32}, 3
        s_mul_i32 s{s.sT0}, s{s.sT0}, {CH}
        s_add_u32 s{s.sT0}, s{s.sT0}, {OFF_KVB}
        v_cndmask_b32 v{s.vT5}, v{s.vT5}, v{s.vL4}, vcc
        s_and_b32 s{s.sT1}, s{s.sT32}, 7
        s_lshl_b32 s{s.sT2}, s{s.sT1}, 10
        s_add_u32 s{s.sKoff}, s{s.sT0}, s{s.sT2}
        s_lshl_b32 s{s.sT2}, s{s.sT1}, 7
        s_add_u32 s{s.sKRoff}, s{s.sT0}, s{s.sT2}
        s_add_u32 s{s.sKRoff}, s{s.sKRoff}, 8192
        """)
        for tl in range(ntile):
            tau = ch*4+tl
            s.q_slice(vD+16*tl, 2*tau, lbl)
            s.q_slice(vD+16*tl+8, 2*((tau+5)%6)+1, lbl)
        if ch == 1:
            b0 = vD+32
            L = a.uid(lbl+"_g")
            a(f"""
            s_cmp_lg_u32 s{s.sJt}, 0
            s_cbranch_scc1 {L}
            v_mul_f32 v{E}, 0xbfb8aa3b, v{b0+12}
            v_exp_f32 v{E}, v{E}
            s_lshl_b32 s{s.sT0}, s{s.sT32}, 7
            s_add_u32 s{s.sT0}, s{s.sT0}, {OFF_G}
            v_add_f32 v{E}, 1.0, v{E}
            v_rcp_f32 v{E}, v{E}
            s_nop 0
            """)
            s.st(f"buffer_store_dword v{E}, v{s.vT5}, s[12:15], s{s.sT0} offen")
            a(f"{L}:")
            for aa in range(3):
                L = a.uid(lbl+"_r")
                b = b0+4*aa
                s.list_kind(4*aa)
                a(f"""
                s_lshl_b32 s{s.sT0}, s{s.sHead}, 6
                s_add_u32 s{s.sT3}, s{s.sT0}, s{s.sT32}
                s_lshl_b32 s{s.sT3}, s{s.sT3}, 7             ; (head*64+t32)*128
                v_lshlrev_b32 v{s.vT1}, 14, v{s.vHf}
                v_add_u32 v{s.vT0}, v{s.vL4}, v{s.vT1}
                s_cmp_eq_u32 s{s.sKind}, 1
                s_cbranch_scc1 {L}_k
                s_cmp_eq_u32 s{s.sKind}, 2
                s_cbranch_scc1 {L}_phi
                """)
                for i in range(4): a(f"v_mul_f32 v{b+i}, {QSC}, v{b+i}")
                a(f"s_add_u32 s{s.sBase}, s{s.sT3}, {OFF_QBR}\ns_mov_b32 s{s.sT4}, 8192\ns_branch {L}_st\n{L}_phi:")
                s.phi8([b+i for i in range(4)], E)
                a(f"s_add_u32 s{s.sBase}, s{s.sT3}, {OFF_PQR}\ns_mov_b32 s{s.sT4}, 8192\ns_branch {L}_st\n{L}_k:")
                a(f"""
                v_mul_f32 v{E}, v{b}, v{b}
                v_mul_f32 v{E+1}, v{b+2}, v{b+2}
                v_fmac_f32 v{E}, v{b+1}, v{b+1}
                v_fmac_f32 v{E+1}, v{b+3}, v{b+3}
                s_add_u32 s{s.sT1}, s{s.sT3}, {OFF_KNR}
                s_add_u32 s{s.sT2}, s{s.sT1}, 8192
                """)
                s.st(f"buffer_store_dword v{E}, v{s.vT0}, s[12:15], s{s.sT1} offen")
                s.st(f"buffer_store_dword v{E+1}, v{s.vT0}, s[12:15], s{s.sT2} offen")
                a(f"""
                s_mul_i32 s{s.sBase}, s{s.sHead}, {HS_KVB}
                s_add_u32 s{s.sBase}, s{s.sBase}, s{s.sKRoff}
                s_mov_b32 s{s.sT4}, {HS_KVB}
                v_mul_u32_u24 v{s.vT1}, {2*HS_KVB}, v{s.vHf}
                v_add_u32 v{s.vT0}, v{s.vL4}, v{s.vT1}
                {L}_st:
                v_cvt_pk_bf16_f32 v{b}, v{b}, v{b+1}
                v_cvt_pk_bf16_f32 v{b+1}, v{b+2}, v{b+3}
                s_add_u32 s{s.sT4}, s{s.sT4}, s{s.sBase}
                """)
                s.st(f"buffer_store_dword v{b}, v{s.vT0}, s[12:15], s{s.sBase} offen")
                s.st(f"buffer_store_dword v{b+1}, v{s.vT0}, s[12:15], s{s.sT4} offen")
        a("s_barrier")
    def v_stage(self, b, vAddr, vKind, lbl):
        a=self.a; s=self; E=s.vE
        L = a.uid(lbl+"_v")
        a(f"v_cmp_eq_u32 vcc, 2, v{vKind}\ns_nop 3\ns_cmp_eq_u64 vcc, 0\ns_cbranch_scc1 {L}")
        a(f"s_cmp_eq_u64 vcc, -1\ns_cbranch_scc0 {L}_mix")
        s.phi8([b+i for i in range(16)], E)
        a(f"{L}:")
        for hs in range(2):
            for i in range(4): a(f"v_cvt_pk_bf16_f32 v{b+8*hs+i}, v{b+8*hs+2*i}, v{b+8*hs+2*i+1}")
        a(f"ds_write_b128 v{vAddr}, {v(b,4)}")
        a(f"ds_write_b128 v{vAddr}, {v(b+8,4)} offset:640")
        def mix():
            a(f"{L}_mix:")
            for half in range(2):
                regs = [b+8*half+i for i in range(8)]
                for i,r in enumerate(regs): a(f"v_mov_b32 v{E+8+i}, v{r}")
                s.phi8([E+8+i for i in range(8)], E)
                for i,r in enumerate(regs): a(f"v_cndmask_b32 v{r}, v{r}, v{E+8+i}, vcc")
            a(f"s_branch {L}")
        s.deferred.append(mix)
    def v_epilogue(self, lbl, ch):
        a=self.a; s=self; E=s.vE; vD=s.vD
        T0,T1,T2,T3,T4,T5 = s.vT0,s.vT1,s.vT2,s.vT3,s.vT4,s.vT5
        ntile = 4 if ch==0 else 2
        a(f"""
        v_mul_u32_u24 v{T5}, 320, v{s.vHf}
        s_mul_i32 s{s.sT0}, s{s.sRt}, 1280
        v_add_u32 v{T5}, s{s.sT0}, v{T5}
        s_mul_i32 s{s.sT4}, s{s.sJ8}, 12
        """)
        for tl in range(ntile):
            tau = ch*4+tl
            sA, sB = 2*tau, 2*((tau+5)%6)+1
            a(f"""
            v_cmp_gt_u32 vcc, 16, v{s.vTok}
            v_mov_b32 v{T0}, {sB}
            v_mov_b32 v{T1}, {sA}
            v_cndmask_b32 v{T0}, v{T0}, v{T1}, vcc           ; slice
            v_add_u32 v{T2}, s{s.sT4}, v{T0}
            v_lshrrev_b32 v{T2}, 5, v{T2}                    ; kind
            v_mul_u32_u24 v{T0}, 5120, v{T0}
            v_and_b32 v{T1}, 15, v{s.vTok}
            v_lshlrev_b32 v{T1}, 4, v{T1}
            v_add_u32 v{T0}, v{T0}, v{T1}
            v_add_u32 v{T0}, v{T0}, v{T5}
            """)
            s.v_stage(vD+16*tl, T0, T2, lbl)
        if ch == 1:
            b0 = vD+32
            a(f"""
            v_lshrrev_b32 v{T0}, 2, v{s.vTok}
            v_lshlrev_b32 v{T0}, 1, v{T0}
            v_bfe_u32 v{T1}, v{s.vTok}, 1, 1
            v_add_u32 v{T0}, v{T0}, v{T1}                    ; slice = 2i + (e>>1)
            v_add_u32 v{T2}, s{s.sT4}, v{T0}
            v_lshrrev_b32 v{T2}, 5, v{T2}
            v_mul_u32_u24 v{T0}, 5120, v{T0}
            v_and_b32 v{T1}, 1, v{s.vTok}
            v_lshlrev_b32 v{T1}, 4, v{T1}
            v_add_u32 v{T0}, v{T0}, v{T1}
            v_add_u32 v{T0}, 256, v{T0}
            v_add_u32 v{T0}, v{T0}, v{T5}
            v_cmp_gt_u32 vcc, 24, v{s.vTok}
            v_mov_b32 v{T1}, 0x10000000
            s_nop 0
            v_cndmask_b32 v{T0}, v{T1}, v{T0}, vcc
            """)
            s.v_stage(b0, T0, T2, lbl)
            a(f"""
            v_mul_u32_u24 v{T0}, 5120, v{s.vTok}
            v_add_u32 v{T0}, {18*16}, v{T0}
            v_add_u32 v{T0}, v{T0}, v{T5}
            v_cmp_gt_u32 vcc, 12, v{s.vTok}
            v_mov_b32 v{T1}, 0x10000000
            v_mov_b32 v{E}, 0x3f803f80
            v_mov_b32 v{E+1}, 0x3f803f80
            v_cndmask_b32 v{T0}, v{T1}, v{T0}, vcc
            v_mov_b32 v{E+2}, 0x3f803f80
            v_mov_b32 v{E+3}, 0x3f803f80
            ds_write_b128 v{T0}, {v(E,4)}
            ds_write_b128 v{T0}, {v(E,4)} offset:640
            """)
        a("s_waitcnt lgkmcnt(0)\ns_barrier")
        D = vD
        for i in range(8):
            L = a.uid(lbl+"_c")
            if i == 7: a(f"s_cmp_ge_u32 s{s.sW}, 4\ns_cbranch_scc1 {L}")
            a(f"""
            s_add_u32 s{s.sT0}, s{s.sW}, {8*i}
            s_lshl_b32 s{s.sT1}, s{s.sT0}, 10
            v_add_u32 v{T0}, s{s.sT1}, v{s.vL16}
            ds_read_b128 {v(D+4*i,4)}, v{T0}
            """)
            if i == 7: a(f"{L}:")
        for i in range(8):
            L = a.uid(lbl+"_d")
            if i == 7: a(f"s_cmp_ge_u32 s{s.sW}, 4\ns_cbranch_scc1 {L}")
            a(f"""
            s_add_u32 s{s.sT0}, s{s.sW}, {8*i}
            s_mul_i32 s{s.sT1}, s{s.sT0}, 13108
            s_lshr_b32 s{s.sT1}, s{s.sT1}, 16            ; slice
            s_mul_i32 s{s.sT2}, s{s.sT1}, 5
            s_sub_u32 s{s.sT2}, s{s.sT0}, s{s.sT2}       ; part
            s_add_u32 s{s.sT1}, s{s.sT1}, s{s.sT4}
            s_lshr_b32 s{s.sKind}, s{s.sT1}, 5
            s_and_b32 s{s.sHead}, s{s.sT1}, 31
            s_mul_i32 s{s.sBase}, s{s.sHead}, {HS_V}
            s_add_u32 s{s.sBase}, s{s.sBase}, s{s.sVA}
            s_cmp_eq_u32 s{s.sKind}, 2
            s_cselect_b32 s{s.sT3}, {(OFF_PK-OFF_VA) & 0xffffffff}, 0
            s_add_u32 s{s.sBase}, s{s.sBase}, s{s.sT3}
            s_mul_i32 s{s.sT3}, s{s.sHead}, {HS_KVB}
            s_add_u32 s{s.sT3}, s{s.sT3}, s{s.sVB}
            s_cmp_eq_u32 s{s.sKind}, 0
            s_cselect_b32 s{s.sBase}, s{s.sT3}, s{s.sBase}
            s_lshl_b32 s{s.sT2}, s{s.sT2}, 10
            s_add_u32 s{s.sBase}, s{s.sBase}, s{s.sT2}
            s_waitcnt lgkmcnt({max(6-i,0)})
            """)
            s.st(f"buffer_store_dwordx4 {v(D+4*i,4)}, v{s.vL16}, s[12:15], s{s.sBase} offen")
            if i == 7: a(f"{L}:")
    def v_consts(self):
        a=self.a; s=self
        s.sVB, s.sVA = 82, 83
        a(f"""
        s_lshr_b32 s{s.sT0}, s{s.sR}, 1
        s_mul_i32 s{s.sT0}, s{s.sT0}, {CH}
        s_and_b32 s{s.sT1}, s{s.sR}, 1
        s_mul_i32 s{s.sT1}, s{s.sT1}, 5120
        s_add_u32 s{s.sVB}, s{s.sT0}, s{s.sT1}
        s_add_u32 s{s.sVB}, s{s.sVB}, {OFF_KVB+9216}
        s_mul_i32 s{s.sVA}, s{s.sR}, 5120
        s_add_u32 s{s.sVA}, s{s.sVA}, {OFF_VA}
        """)

class ATT:
    def __init__(self, a, name):
        self.a=a; self.name=name
        s=self
        s.vLane, s.vT0, s.vT1, s.vT2, s.vT3 = 1,2,3,4,5
        s.vAK, s.vAR, s.vAV = 6,7,8
        s.vOffQ, s.vOffR, s.vL4 = 9,10,11
        s.vQ1=[12,16]; s.vQ2=[20,24]; s.vK1=[28,32]; s.vKR=[36,38]; s.vV=[40,48]; s.vP=56; s.vM=[64,65]
        s.vS=[68,84]; s.vO=[100,116]; s.vNM=[132,148]
        s.sW=24
        s.sHead,s.sQb,s.sQt,s.sT0,s.sT1,s.sT2,s.sT3 = 26,27,28,29,30,31,32
        s.sKVB,s.sFlag,s.sQM,s.sQR,s.sHalf,s.sP,s.sOM,s.sOR = 33,34,35,36,37,38,39,40
        s.sF0 = 42
        s.sPass = 44
        s.sKV = 45
    def ids(self):
        a=self.a; s=self
        a(f"""
        s_and_b32 s{s.sHead}, s2, 7
        s_lshl_b32 s{s.sHead}, s{s.sHead}, 2
        s_lshr_b32 s{s.sT0}, s2, 3
        s_and_b32 s{s.sT1}, s{s.sT0}, 3
        s_add_u32 s{s.sHead}, s{s.sHead}, s{s.sT1}
        s_lshr_b32 s{s.sQb}, s2, 5
        v_and_b32 v{s.vLane}, 63, v0
        v_lshlrev_b32 v{s.vOffQ}, 4, v{s.vLane}
        v_and_b32 v{s.vT1}, 31, v{s.vLane}
        v_lshrrev_b32 v{s.vT2}, 5, v{s.vLane}
        v_lshlrev_b32 v{s.vL4}, 2, v{s.vT1}
        s_mul_i32 s{s.sKVB}, s{s.sHead}, {8*CH}
        s_add_u32 s{s.sKVB}, s{s.sKVB}, {OFF_KVB}
        """)
    def compute_pre(self):
        a=self.a; s=self
        s.ids()
        a(f"""
        s_and_b32 s{s.sP}, s{s.sW}, 3
        s_lshr_b32 s{s.sHalf}, s{s.sW}, 2
        s_lshl_b32 s{s.sQt}, s{s.sQb}, 3
        s_lshl_b32 s{s.sT0}, s{s.sP}, 1
        s_add_u32 s{s.sQt}, s{s.sQt}, s{s.sT0}
        s_lshl_b32 s{s.sT0}, s{s.sHead}, 6
        s_add_u32 s{s.sT0}, s{s.sT0}, s{s.sQt}
        s_lshl_b32 s{s.sQM}, s{s.sT0}, 10
        s_lshl_b32 s{s.sQR}, s{s.sT0}, 7
        s_lshl_b32 s{s.sT1}, s{s.sHalf}, 10
        s_add_u32 s{s.sOM}, s{s.sQM}, s{s.sT1}
        s_lshl_b32 s{s.sT1}, s{s.sHalf}, 7
        s_add_u32 s{s.sOR}, s{s.sQR}, s{s.sT1}
        s_mul_i32 s{s.sT0}, s{s.sHalf}, {4*CH}
        v_add_u32 v{s.vAK}, s{s.sT0}, v{s.vOffQ}
        v_lshlrev_b32 v{s.vT0}, 4, v{s.vT1}
        v_mul_u32_u24 v{s.vAV}, 320, v{s.vT2}
        v_add_u32 v{s.vAV}, v{s.vAV}, v{s.vT0}
        v_add_u32 v{s.vAR}, 8192, v{s.vL4}
        v_add_u32 v{s.vAR}, s{s.sT0}, v{s.vAR}
        v_add_u32 v{s.vAV}, 9216, v{s.vAV}
        v_add_u32 v{s.vAV}, s{s.sT0}, v{s.vAV}
        v_mov_b32 v{s.vT0}, 0x10000000
        v_cmp_gt_u32 vcc, 19, v{s.vT1}
        s_nop 1
        v_cndmask_b32 v{s.vAV}, v{s.vT0}, v{s.vAV}, vcc
        v_cmp_gt_u32 vcc, 32, v{s.vLane}
        s_nop 1
        v_cndmask_b32 v{s.vAR}, v{s.vT0}, v{s.vAR}, vcc
        v_mov_b32 v{s.vT0}, {BIG}
        v_cndmask_b32 v{s.vOffR}, v{s.vT0}, v{s.vL4}, vcc
        """)
        for i in range(16): a(f"v_mov_b32 v{s.vO[0]+i}, 0\nv_mov_b32 v{s.vO[1]+i}, 0")
        for i in range(8): a(f"v_mov_b32 v{s.vP+i}, 0")
        for i in range(16): a(f"v_mov_b32 v{s.vV[0]+i}, 0")
    def compute_main(self):
        a=self.a; s=self; name=s.name
        vT0,vT1,vT2,vT3,vLane = s.vT0,s.vT1,s.vT2,s.vT3,s.vLane
        vQ1,vQ2,vM,vS,vO,vNM,vK1,vKR,vV,vP = s.vQ1,s.vQ2,s.vM,s.vS,s.vO,s.vNM,s.vK1,s.vKR,s.vV,s.vP
        sT0,sT1,sT2,sT3,sF0 = s.sT0,s.sT1,s.sT2,s.sT3,s.sF0
        a(f"""
        s_add_u32 s{sT0}, s{s.sQM}, {OFF_QBM}
        s_add_u32 s{sT1}, s{s.sQR}, {OFF_QBR}
        buffer_load_dwordx4 {v(vQ1[0],4)}, v{s.vOffQ}, s[12:15], s{sT0} offen sc1
        buffer_load_dwordx4 {v(vQ1[1],4)}, v{s.vOffQ}, s[12:15], s{sT0} offen offset:1024 sc1
        buffer_load_dword v{vQ2[0]}, v{s.vL4}, s[12:15], s{sT1} offen sc1
        buffer_load_dword v{vQ2[1]}, v{s.vL4}, s[12:15], s{sT1} offen offset:128 sc1
        v_cmp_gt_u32 vcc, 32, v{vLane}
        s_waitcnt vmcnt(0)
        v_cndmask_b32 v{vQ2[0]}, 0, v{vQ2[0]}, vcc
        v_cndmask_b32 v{vQ2[1]}, 0, v{vQ2[1]}, vcc
        """)
        for i in range(4):
            a(f"""
            v_dot2_f32_bf16 v{vT0}, v{vQ1[0]+i}, v{vQ1[0]+i}, {('0' if i==0 else 'v%d'%vT0)}
            v_dot2_f32_bf16 v{vT1}, v{vQ1[1]+i}, v{vQ1[1]+i}, {('0' if i==0 else 'v%d'%vT1)}
            """)
        a(f"""
        v_dot2_f32_bf16 v{vT0}, v{vQ2[0]}, v{vQ2[0]}, v{vT0}
        v_dot2_f32_bf16 v{vT1}, v{vQ2[1]}, v{vQ2[1]}, v{vT1}
        s_barrier
        v_and_b32 v{vT2}, 15, v{vLane}
        v_lshlrev_b32 v{vT2}, 3, v{vT2}
        v_add_u32 v{vT2}, {KCELL}, v{vT2}
        ds_read_b64 {v(vM[0],2)}, v{vT2}
        s_waitcnt lgkmcnt(0)
        """)
        for k in (1,2,4,8):
            a(f"v_max_u32_dpp v{vM[0]}, v{vM[0]}, v{vM[0]} row_ror:{k} row_mask:0xf bank_mask:0xf")
            a(f"v_max_u32_dpp v{vM[1]}, v{vM[1]}, v{vM[1]} row_ror:{k} row_mask:0xf bank_mask:0xf\ns_nop 0")
        a(f"""
        s_nop 0
        v_add_f32 v{vM[1]}, v{vM[0]}, v{vM[1]}
        v_mov_b32 v{vQ2[0]+1}, 0
        v_mov_b32 v{vQ2[0]+2}, 0
        v_mov_b32 v{vQ2[0]+3}, v{vQ2[0]}
        v_mov_b32 v{vQ2[1]+1}, 0
        v_mov_b32 v{vQ2[1]+2}, 0
        v_mov_b32 v{vQ2[1]+3}, v{vQ2[1]}
        v_mov_b32 v{vT2}, v{vT0}
        v_mov_b32 v{vT3}, v{vT1}
        s_nop 1
        v_permlane32_swap_b32 v{vT0}, v{vT2}
        v_permlane32_swap_b32 v{vT1}, v{vT3}
        s_nop 1
        v_add_f32 v{vT0}, v{vT0}, v{vT2}
        v_add_f32 v{vT1}, v{vT1}, v{vT3}
        v_mul_f32 v{vT0}, v{vT0}, v{vM[1]}
        v_mul_f32 v{vT1}, v{vT1}, v{vM[1]}
        v_sqrt_f32 v{vT0}, v{vT0}
        v_sqrt_f32 v{vT1}, v{vT1}
        s_nop 0
        v_mul_f32 v{vM[0]}, 0x3f828f5c, v{vT0}
        v_mul_f32 v{vM[1]}, 0x3f828f5c, v{vT1}
        v_add_f32 v{vM[0]}, 0x3a83126f, v{vM[0]}
        v_add_f32 v{vM[1]}, 0x3a83126f, v{vM[1]}
        v_max_f32 v{vT0}, v{vM[0]}, v{vM[1]}
        v_mov_b32 v{vT1}, 0x42400000
        v_cmp_nle_f32 vcc, v{vT0}, v{vT1}
        v_cmp_u_f32 s[{sF0}:{sF0+1}], v{vM[0]}, v{vM[1]}
        s_nop 3
        s_or_b64 vcc, vcc, s[{sF0}:{sF0+1}]
        s_cmp_lg_u64 vcc, 0
        s_cselect_b32 s{s.sFlag}, 1, 0
        v_mov_b32 v{vT2}, s{s.sFlag}
        s_lshl_b32 s{sT0}, s{s.sW}, 2
        s_add_u32 s{sT0}, s{sT0}, {FLAGS}
        v_mov_b32 v{vT3}, s{sT0}
        ds_write_b32 v{vT3}, v{vT2}
        """)
        def set_negm():
            for q in range(2):
                a(f"v_sub_f32 v{vNM[q]}, 0, v{vM[q]}")
                for i in range(1,16): a(f"v_mov_b32 v{vNM[q]+i}, v{vNM[q]}")
        set_negm()
        a("s_waitcnt lgkmcnt(0)\ns_barrier")
        s.stamp('BA0')
        s.read_flag()
        a(f"s_cbranch_scc0 {name}_fb")
        a(f"{name}_fast:")
        if "yprio" in s.dbg:
            a(f"s_cmp_ge_u32 s{s.sW}, 4\ns_cbranch_scc0 {name}_yp\ns_setprio 1\n{name}_yp:")
        def koff(t): return t*1024 if t < 8 else CH + (t-8)*1024
        def roff(t): return t*128 if t < 8 else CH + (t-8)*128
        def voff(t,j): return (t*2+j)*640 if t < 8 else CH + ((t-8)*2+j)*640
        def rdK(t):
            if "lnods" in s.dbg and s.inloop: return
            a.ds(f"ds_read_b128 {v(vK1[t&1],4)}, v{s.vAK} offset:{koff(t)}", ("k",t))
            if t%2==0:
                if t < 8:
                    a.ds(f"ds_read2_b32 {v(vKR[(t//2)&1],2)}, v{s.vAR} offset0:{roff(t)//4} offset1:{roff(t)//4+32}", ("k",t))
                else:
                    a(f"v_add_u32 v{vT0}, {CH}, v{s.vAR}")
                    a.ds(f"ds_read2_b32 {v(vKR[(t//2)&1],2)}, v{vT0} offset0:0 offset1:32", ("k",t))
        def rdV(t):
            if "lnods" in s.dbg and s.inloop: return
            a.ds(f"ds_read_b128 {v(vV[t&1],4)}, v{s.vAV} offset:{voff(t,0)}", ("v",t))
            a.ds(f"ds_read_b128 {v(vV[t&1]+4,4)}, v{s.vAV} offset:{voff(t,1)}", ("v",t))
        def S1(u):
            t,q = u//2,u%2
            a(f"v_mfma_f32_32x32x16_bf16 {v(vS[u&1],16)}, {v(vK1[t&1],4)}, {v(vQ1[q],4)}, {v(vNM[q],16)}")
        def S2(u):
            t,q = u//2,u%2
            a(f"v_mfma_f32_32x32x8_bf16 {v(vS[u&1],16)}, {v(vKR[(t//2)&1],2)}, {v(vQ2[q]+2*(t&1),2)}, {v(vS[u&1],16)}")
        def PV(u,j):
            t,q = (u//2),u%2
            a(f"v_mfma_f32_32x32x16_bf16 {v(vO[q],16)}, {v(vV[t&1]+4*j,4)}, {v(vP+4*j,4)}, {v(vO[q],16)}")
        a.lg=[]
        s.inloop = False
        rdK(0); rdV(0); rdK(1)
        a.wait_lg(("k",0))
        S1(0); S2(0)
        a(f"s_mov_b32 s{s.sPass}, 0\ns_nop 7\ns_nop 3")
        a(f"{name}_loop:")
        s.inloop = True
        a.lg=[("v",0),("v",0),("k",1)]
        for u in range(16):
            t,q = u//2,u%2
            cur = vS[u&1]
            E = lambda i: a(f"v_exp_f32 v{cur+i}, v{cur+i}")
            C = lambda p: a(f"v_cvt_pk_bf16_f32 v{vP+p}, v{cur+2*p}, v{cur+2*p+1}")
            def G(g):
                for i in range(4*g,4*g+4): E(i)
                C(2*g); C(2*g+1)
            if q == 0 and t == 6:
                if "nol" in s.dbg:
                    a(f"s_cmp_eq_u32 s{s.sPass}, 0\ns_cbranch_scc0 {name}_nb\ns_barrier\n{name}_nb:")
                else:
                    a("s_barrier")
            a.wait_lg(("k", (u+1)//2))
            S1(u+1)
            G(0)
            PV(u-1 if u>0 else 15, 1)
            if q == 0: rdV(t+1)
            else: rdK(t+2)
            G(1)
            S2(u+1)
            G(2)
            a.wait_lg(("v", t))
            PV(u, 0)
            G(3)
        assert "lnods" in s.dbg or a.lg == [("v",8),("v",8),("k",9)], a.lg
        a(f"""
        v_add_u32 v{s.vAK}, {CH}, v{s.vAK}
        v_add_u32 v{s.vAR}, {CH}, v{s.vAR}
        v_add_u32 v{s.vAV}, {CH}, v{s.vAV}
        s_add_u32 s{s.sPass}, s{s.sPass}, 1
        s_cmp_lt_u32 s{s.sPass}, 4
        s_cbranch_scc1 {name}_loop
        """)
        PV(15, 1)
        s.stamp('loop_end')
        a.lg=[]
        a("s_waitcnt lgkmcnt(0)\ns_nop 7\ns_nop 3\ns_barrier")
        s.stamp('BE0')
        a(f"s_mul_i32 s{sT0}, s{s.sW}, 3072\ns_add_u32 s{sT0}, s{sT0}, {OXCH}\nv_add_u32 v{vT0}, s{sT0}, v{s.vOffQ}")
        a(f"s_cmp_eq_u32 s{s.sHalf}, 0\ns_cbranch_scc1 {name}_h0")
        for qd in range(3): a(f"ds_write_b128 v{vT0}, {v(vO[0]+4*qd,4)} offset:{1024*qd}")
        a("s_waitcnt lgkmcnt(0)")
        for i in range(12): a(f"v_mov_b32 v{vO[0]+i}, v{vO[1]+i}")
        a(f"s_branch {name}_h1\n{name}_h0:")
        for qd in range(3): a(f"ds_write_b128 v{vT0}, {v(vO[1]+4*qd,4)} offset:{1024*qd}")
        a(f"{name}_h1:")
        if s.full:
            a(f"""
            s_lshl_b32 s{sT0}, s{s.sP}, 1
            s_add_u32 s{sT0}, s{sT0}, s{s.sHalf}
            s_lshl_b32 s{sT0}, s{sT0}, 7
            s_add_u32 s{sT0}, s{sT0}, {GCELL}
            v_add_u32 v{vT1}, s{sT0}, v{s.vL4}
            ds_read_b32 v64, v{vT1}
            """)
        a("s_waitcnt lgkmcnt(0)\ns_barrier")
        s.stamp('BE1')
        a(f"s_xor_b32 s{sT1}, s{s.sW}, 4\ns_mul_i32 s{sT1}, s{sT1}, 3072\ns_add_u32 s{sT1}, s{sT1}, {OXCH}\nv_add_u32 v{vT1}, s{sT1}, v{s.vOffQ}")
        for qd in range(3): a(f"ds_read_b128 {v(vS[0]+4*qd,4)}, v{vT1} offset:{1024*qd}")
        a("s_waitcnt lgkmcnt(0)")
        for i in range(12): a(f"v_add_f32 v{vO[0]+i}, v{vO[0]+i}, v{vS[0]+i}")
        if s.full:
            s.norm_store(vO[0], OFF_OBM, OFF_OBR, False, s.sOM, s.sOR, 64)
            s.stamp('OBst')
            a("s_waitcnt vmcnt(0)\ns_barrier")
            s.stamp('BE2')
            s.p45_ids()
            s.p45_oloads(0)
            s.p45_compute()
        else:
            s.norm_store(vO[0], OFF_OBM, OFF_OBR, False, s.sOM, s.sOR)
            a("s_waitcnt vmcnt(0)\ns_barrier")
    def p45_ids(self):
        a=self.a; s=self
        s.sCol, s.sRow, s.sKq, s.sQt2 = 70, 71, 72, 73
        a(f"""
        s_and_b32 s{s.sRow}, s2, 7
        s_lshl_b32 s{s.sRow}, s{s.sRow}, 2
        s_lshr_b32 s{s.sT2}, s2, 3
        s_and_b32 s{s.sT3}, s{s.sT2}, 3
        s_add_u32 s{s.sRow}, s{s.sRow}, s{s.sT3}
        s_lshr_b32 s{s.sCol}, s{s.sT2}, 2
        s_lshr_b32 s{s.sKq}, s{s.sW}, 1
        s_and_b32 s{s.sT3}, s{s.sW}, 1
        s_lshl_b32 s{s.sQt2}, s{s.sRow}, 1
        s_add_u32 s{s.sQt2}, s{s.sQt2}, s{s.sT3}
        """)
    def p45_oloads(self, br):
        a=self.a; s=self
        offM = OFF_OAM if br==0 else OFF_OBM
        offR = OFF_OAR if br==0 else OFF_OBR
        vOM = 28
        a(f"""
        s_lshl_b32 s{s.sT2}, s{s.sKq}, 9
        s_add_u32 s{s.sT2}, s{s.sT2}, s{s.sQt2}
        s_lshl_b32 s{s.sT2}, s{s.sT2}, 10
        s_add_u32 s{s.sT2}, s{s.sT2}, {offM}
        """)
        for i in range(8):
            a(f"buffer_load_dwordx4 {v(vOM+4*i,4)}, v{s.vOffQ}, s[12:15], s{s.sT2} offen sc1")
            if i<7: a(f"s_add_u32 s{s.sT2}, s{s.sT2}, 65536")
        a(f"""
        s_lshl_b32 s{s.sT2}, s{s.sKq}, 16
        s_lshl_b32 s{s.sT3}, s{s.sQt2}, 7
        s_add_u32 s{s.sT2}, s{s.sT2}, s{s.sT3}
        s_add_u32 s{s.sT2}, s{s.sT2}, {offR}
        v_lshrrev_b32 v65, 5, v{s.vLane}
        v_lshlrev_b32 v65, 15, v65
        v_add_u32 v65, v65, v{s.vL4}
        """)
        for i in range(4):
            a(f"buffer_load_dword v{vOM+32+i}, v65, s[12:15], s{s.sT2} offen sc1")
            if i<3: a(f"s_add_u32 s{s.sT2}, s{s.sT2}, 8192")
    def p45_compute(self):
        a=self.a; s=self; name=s.name
        vT0,vT1,vT2,vT3,vLane = s.vT0,s.vT1,s.vT2,s.vT3,s.vLane
        vOM, vWF, vD = 28, [68, 80], 116
        vWR, vWR2 = 6, 7
        a(f"""
        v_lshrrev_b32 v{vT0}, 4, v{vLane}
        v_and_b32 v{vT1}, 1, v{vT0}
        v_lshrrev_b32 v{vT0}, 1, v{vT0}
        v_and_b32 v{vT2}, 15, v{vLane}
        v_lshrrev_b32 v{vT3}, 2, v{vT2}
        v_and_b32 v{vT2}, 3, v{vT2}
        v_lshlrev_b32 v{vT1}, 5, v{vT1}
        v_lshlrev_b32 v{vT2}, 3, v{vT2}
        v_add_u32 v{vT1}, v{vT1}, v{vT2}
        v_mul_u32_u24 v{vT3}, 144, v{vT3}
        v_add_u32 v{vT1}, v{vT1}, v{vT3}
        s_and_b32 s{s.sT2}, s{s.sKq}, 1
        s_mul_i32 s{s.sT2}, s{s.sT2}, {WQ[1]}
        s_lshr_b32 s{s.sT3}, s{s.sKq}, 1
        s_mul_i32 s{s.sT3}, s{s.sT3}, {WQ[2]}
        s_add_u32 s{s.sT2}, s{s.sT2}, s{s.sT3}
        v_add_u32 v{vT1}, s{s.sT2}, v{vT1}
        v_mul_u32_u24 v{vT2}, {4*144}, v{vT0}
        v_add_u32 v{vWR}, v{vT1}, v{vT2}
        v_mul_u32_u24 v{vT2}, {4*18*144}, v{vT0}
        v_add_u32 v{vWR2}, v{vT1}, v{vT2}
        """)
        st = []
        for i in range(8):
            off = 0 if i%2==0 else 2
            st.append((vWR, [(18*i+off+8*u)*144 for u in range(2)], v(vOM+4*i,4)))
        st.append((vWR2, [(18*(2*u)+16)*144 for u in range(2)], v(vOM+32,4)))
        def part(first):
            a.lg=[]
            def rd(k):
                reg, offs, _ = st[k]
                for tl in range(3):
                    for u in range(2):
                        a.ds(f"ds_read_b64_tr_b16 {v(vWF[k&1]+4*tl+2*u,2)}, v{reg} offset:{offs[u]+64*tl}", ("w",k))
            rd(0)
            for k in range(9):
                if k+1 < 9: rd(k+1)
                a(f"s_waitcnt vmcnt({(11-k) if k<8 else 0})")
                a.wait_lg(("w",k))
                for tl in range(3):
                    C = "0" if (first and k==0) else v(vD+16*tl,16)
                    a(f"v_mfma_f32_32x32x16_bf16 {v(vD+16*tl,16)}, {v(vWF[k&1]+4*tl,4)}, {st[k][2]}, {C}")
        part(True)
        a("s_barrier")
        s.stamp('BA')
        a(f"""
        s_mov_b32 s{s.sT2}, {WQB[0]-WQ[0]}
        s_cmp_eq_u32 s{s.sKq}, 1
        s_cselect_b32 s{s.sT2}, {WQB[1]-WQ[1]}, s{s.sT2}
        s_cmp_eq_u32 s{s.sKq}, 2
        s_cselect_b32 s{s.sT2}, {WQB[2]-WQ[2]}, s{s.sT2}
        s_cmp_eq_u32 s{s.sKq}, 3
        s_cselect_b32 s{s.sT2}, {(WQB[3]-WQ[3]) & 0xffffffff}, s{s.sT2}
        v_add_u32 v{vWR}, s{s.sT2}, v{vWR}
        v_add_u32 v{vWR2}, s{s.sT2}, v{vWR2}
        """)
        a("s_barrier")
        s.stamp('BF')
        s.p45_oloads(1)
        part(False)
        a("s_nop 15\ns_nop 3\ns_barrier")
        s.stamp('BR0')
        a(f"""
        s_and_b32 s{s.sT3}, s{s.sW}, 1
        s_lshl_b32 s{s.sT2}, s{s.sT3}, 5
        v_and_b32 v{vT1}, 31, v{vLane}
        v_add_u32 v{vT0}, s{s.sT2}, v{vT1}
        v_mul_u32_u24 v{vT0}, 304, v{vT0}
        s_mul_i32 s{s.sT2}, s{s.sKq}, {64*304}
        v_add_u32 v{vT0}, s{s.sT2}, v{vT0}
        v_lshrrev_b32 v{vT1}, 5, v{vLane}
        v_lshlrev_b32 v{vT1}, 4, v{vT1}
        v_add_u32 v{vT0}, v{vT0}, v{vT1}
        """)
        for tl in range(3):
            for aa in range(4):
                if tl==2 and aa>0: continue
                a(f"ds_write_b128 v{vT0}, {v(vD+16*tl+4*aa,4)} offset:{(32*tl+8*aa)*4}")
        a("s_waitcnt lgkmcnt(0)\ns_barrier")
        s.stamp('BR1')
        def final(task):
            R = 28
            a(f"""
            v_mul_u32_u24 v{vT1}, 7282, v{task}
            v_lshrrev_b32 v{vT1}, 16, v{vT1}
            v_mul_u32_u24 v{vT2}, 9, v{vT1}
            v_sub_u32 v{vT2}, v{task}, v{vT2}
            v_mul_u32_u24 v{vT3}, 304, v{vT1}
            v_lshlrev_b32 v66, 5, v{vT2}
            v_add_u32 v{vT3}, v{vT3}, v66
            """)
            for kq in range(4):
                a(f"ds_read_b128 {v(R+8*kq,4)}, v{vT3} offset:{kq*64*304}")
                a(f"ds_read_b128 {v(R+8*kq+4,4)}, v{vT3} offset:{kq*64*304+16}")
            a(f"""
            s_lshl_b32 s{s.sT2}, s{s.sRow}, 6
            v_add_u32 v{vT1}, s{s.sT2}, v{vT1}
            v_mul_u32_u24 v{vT1}, 1152, v{vT1}
            v_lshlrev_b32 v{vT2}, 4, v{vT2}
            v_add_u32 v{vT1}, v{vT1}, v{vT2}
            s_mul_i32 s{s.sT2}, s{s.sCol}, 144
            s_waitcnt lgkmcnt(0)
            """)
            for i in range(8):
                a(f"v_add_f32 v{R+i}, v{R+i}, v{R+8+i}")
                a(f"v_add_f32 v{R+16+i}, v{R+16+i}, v{R+24+i}")
            for i in range(8): a(f"v_add_f32 v{R+i}, v{R+i}, v{R+16+i}")
            for p in range(4): a(f"v_cvt_pk_bf16_f32 v{60+p}, v{R+2*p}, v{R+2*p+1}")
            a(f"buffer_store_dwordx4 v[60:63], v{vT1}, s[88:91], s{s.sT2} offen")
        a(f"v_and_b32 v{vT0}, 0x3ff, v0")
        final(vT0)
        a(f"s_cmp_lg_u32 s{s.sW}, 0\ns_cbranch_scc1 {name}_fin")
        a(f"v_add_u32 v{vT0}, 512, v{vLane}\ns_nop 1")
        final(vT0)
        a(f"{name}_fin:")
    def w_patterns(self):
        a=self.a; s=self
        for n in range(9):
            a(f"""
            v_add_u32 v{s.vT0}, {64*n}, v{s.vLane}
            v_mul_u32_u24 v{s.vT1}, 7282, v{s.vT0}
            v_lshrrev_b32 v{s.vT1}, 16, v{s.vT1}
            v_mul_u32_u24 v{s.vT2}, 9, v{s.vT1}
            v_sub_u32 v{s.vT2}, v{s.vT0}, v{s.vT2}
            v_mul_u32_u24 v{s.vT1}, 1152, v{s.vT1}
            v_lshlrev_b32 v{s.vT2}, 4, v{s.vT2}
            v_add_u32 v{140+n}, v{s.vT1}, v{s.vT2}
            """)
    def w_quarter_dma(self, srd, sq, sreg):
        a=self.a; s=self
        a(f"""
        s_mul_i32 s{s.sT0}, s{sq}, {144*1152}
        s_mul_i32 s{s.sT1}, s{s.sCol}, 144
        s_add_u32 s{s.sT0}, s{s.sT0}, s{s.sT1}
        """)
        for n in range(21):
            if n == 20: a("s_mov_b64 exec, 0xffff")
            a(f"s_add_u32 m0, s{sreg}, {n*1024}")
            a(f"s_add_u32 s{s.sT1}, s{s.sT0}, {(n//9)*64*1152}")
            a(f"buffer_load_dwordx4 v{140+n%9}, {srd}, s{s.sT1} offen lds")
        a("s_mov_b64 exec, -1")
    def w_quarter_to_regs(self, srd, sq):
        a=self.a; s=self
        a(f"""
        s_mul_i32 s{s.sT0}, s{sq}, {144*1152}
        s_mul_i32 s{s.sT1}, s{s.sCol}, 144
        s_add_u32 s{s.sT0}, s{s.sT0}, s{s.sT1}
        """)
        for n in range(21):
            if n == 20: a("s_mov_b64 exec, 0xffff")
            a(f"s_add_u32 s{s.sT1}, s{s.sT0}, {(n//9)*64*1152}")
            a(f"buffer_load_dwordx4 {v(56+4*n,4)}, v{140+n%9}, {srd}, s{s.sT1} offen")
        a("s_mov_b64 exec, -1")
    def w_regs_to_lds(self, sreg):
        a=self.a; s=self
        a(f"v_add_u32 v{s.vT0}, s{sreg}, v{s.vOffQ}")
        for n in range(21):
            if n == 20: a("s_mov_b64 exec, 0xffff")
            a(f"ds_write_b128 v{s.vT0}, {v(56+4*n,4)} offset:{n*1024}")
        a("s_mov_b64 exec, -1")
    def w_quarter3_split(self, srd):
        a=self.a; s=self
        a(f"""
        s_mul_i32 s{s.sT1}, s{s.sCol}, 144
        s_add_u32 s{s.sT0}, s{s.sT1}, {3*144*1152}
        """)
        for j in range(4):
            L = a.uid("q3")
            a(f"s_cmp_lg_u32 s{s.sW}, {j}\ns_cbranch_scc1 {L}")
            for n in range(j, 21, 4):
                if n == 20: a("s_mov_b64 exec, 0xffff")
                a(f"s_mov_b32 m0, {WQB[3] + n*1024}")
                a(f"s_add_u32 s{s.sT1}, s{s.sT0}, {(n//9)*64*1152}")
                a(f"buffer_load_dwordx4 v{140+n%9}, {srd}, s{s.sT1} offen lds")
            a("s_mov_b64 exec, -1")
            a(f"{L}:")
    def wait_fl2(self, off, tag, extra_gate=False):
        a=self.a; s=self; L=f"{s.name}_w2{tag}"
        a(f"""
        s_and_b32 s{s.sT0}, s2, 7
        s_lshl_b32 s{s.sT0}, s{s.sT0}, 12
        s_add_u32 s{s.sT0}, s{s.sT0}, {off}
        v_and_b32 v{s.vT1}, 31, v{s.vLane}
        v_lshlrev_b32 v{s.vT1}, 7, v{s.vT1}
        """)
        s.poll(L)
    def set_fl2(self, off):
        a=self.a; s=self
        a(f"""
        s_lshl_b32 s{s.sT0}, s{s.sQb}, 5
        s_add_u32 s{s.sT0}, s{s.sT0}, s{s.sHead}
        s_lshl_b32 s{s.sT0}, s{s.sT0}, 7
        s_add_u32 s{s.sT0}, s{s.sT0}, {off}
        v_mov_b32 v{s.vT0}, s47
        v_mov_b32 v{s.vT1}, 0
        s_mov_b64 exec, 1
        buffer_store_dword v{s.vT0}, v{s.vT1}, s[12:15], s{s.sT0} offen sc1
        s_mov_b64 exec, -1
        """)
    def read_flag(self):
        a=self.a; s=self
        b = s.vS[0]
        a(f"v_mov_b32 v{s.vT3}, {FLAGS}")
        a(f"ds_read_b128 {v(b,4)}, v{s.vT3}\nds_read_b128 {v(b+4,4)}, v{s.vT3} offset:16\ns_waitcnt lgkmcnt(0)")
        for i in range(1,8): a(f"v_or_b32 v{b}, v{b}, v{b+i}")
        a(f"s_nop 0\nv_readfirstlane_b32 s{s.sFlag}, v{b}\ns_nop 3\ns_cmp_eq_u32 s{s.sFlag}, 0")
    def compute_fallback(self):
        a=self.a; s=self; name=s.name
        vT0,vT1,vM,vS,vK1,vKR,vQ1,vQ2,vNM = s.vT0,s.vT1,s.vM,s.vS,s.vK1,s.vKR,s.vQ1,s.vQ2,s.vNM
        a(f"{name}_fb:")
        a("s_barrier")
        a(f"""
        v_mov_b32 v{vM[0]}, 0xff7fffff
        v_mov_b32 v{vM[1]}, 0xff7fffff
        v_mov_b32 v{vT0}, v{s.vOffQ}
        v_add_u32 v{vT1}, 8192, v{s.vL4}
        s_mov_b32 s{s.sT0}, 0
        {name}_fb_chunk:
        """)
        for t in range(8):
            a(f"ds_read_b128 {v(vK1[0],4)}, v{vT0} offset:{t*1024}")
            if t%2==0: a(f"ds_read2_b32 {v(vKR[0],2)}, v{vT1} offset0:{t*32} offset1:{t*32+32}")
            a("s_waitcnt lgkmcnt(0)")
            for q in range(2):
                a(f"v_mfma_f32_32x32x16_bf16 {v(vS[q],16)}, {v(vK1[0],4)}, {v(vQ1[q],4)}, 0")
                a(f"v_mfma_f32_32x32x8_bf16 {v(vS[q],16)}, {v(vKR[0],2)}, {v(vQ2[q]+2*(t&1),2)}, {v(vS[q],16)}")
            a("s_nop 15\ns_nop 3")
            for q in range(2):
                for j in range(0,16,2): a(f"v_max3_f32 v{vM[q]}, v{vM[q]}, v{vS[q]+j}, v{vS[q]+j+1}")
        a(f"""
        v_add_u32 v{vT0}, {CH}, v{vT0}
        v_add_u32 v{vT1}, {CH}, v{vT1}
        s_add_u32 s{s.sT0}, s{s.sT0}, 1
        s_cmp_lt_u32 s{s.sT0}, 8
        s_cbranch_scc1 {name}_fb_chunk
        v_mov_b32 v{vT0}, v{vM[0]}
        v_mov_b32 v{vT1}, v{vM[1]}
        s_nop 1
        v_permlane32_swap_b32 v{vM[0]}, v{vT0}
        v_permlane32_swap_b32 v{vM[1]}, v{vT1}
        s_nop 1
        v_max_f32 v{vM[0]}, v{vM[0]}, v{vT0}
        v_max_f32 v{vM[1]}, v{vM[1]}, v{vT1}
        """)
        for q in range(2):
            a(f"v_sub_f32 v{vNM[q]}, 0, v{vM[q]}")
            for i in range(1,16): a(f"v_mov_b32 v{vNM[q]+i}, v{vNM[q]}")
        a(f"s_branch {name}_fast")
    def norm_store(self, acc, offM, offR, eps, sM, sR, vGate=None):
        a=self.a; s=self
        vT0,vT1,vP = s.vT0,s.vT1,s.vP
        a(f"v_mov_b32 v{vT0}, v{acc+10}\nv_mov_b32 v{vT1}, v{acc+10}\ns_nop 1")
        a(f"v_permlane32_swap_b32 v{vT0}, v{vT1}\ns_nop 1")
        if eps: a(f"v_add_f32 v{vT0}, 0x358637bd, v{vT0}")
        a(f"v_rcp_f32 v{vT0}, v{vT0}\ns_nop 0")
        if vGate is not None: a(f"v_mul_f32 v{vT0}, v{vT0}, v{vGate}")
        for i in range(10): a(f"v_mul_f32 v{acc+i}, v{acc+i}, v{vT0}")
        for p in range(5): a(f"v_cvt_pk_bf16_f32 v{acc+p}, v{acc+2*p}, v{acc+2*p+1}")
        a(f"s_add_u32 s{s.sT0}, s{sM}, {offM}\ns_add_u32 s{s.sT1}, s{sR}, {offR}")
        a(f"buffer_store_dwordx4 {v(acc,4)}, v{s.vOffQ}, s[12:15], s{s.sT0} offen sc1")
        a(f"buffer_store_dword v{acc+4}, v{s.vOffR}, s[12:15], s{s.sT1} offen sc1")
    def wait_flags(self, branch, tag):
        a=self.a; s=self; L = f"{s.name}_wf{tag}"
        qi, ki, vi = ((0,32,0) if branch==0 else (64,32,64))
        kv8 = 0 if branch==0 else 8
        a(f"""
        s_add_u32 s{s.sT0}, s{s.sHead}, {qi}
        s_mul_i32 s{s.sT0}, s{s.sT0}, 5462
        s_lshr_b32 s{s.sT0}, s{s.sT0}, 16
        s_add_u32 s{s.sT1}, s{s.sHead}, {ki}
        s_mul_i32 s{s.sT1}, s{s.sT1}, 5462
        s_lshr_b32 s{s.sT1}, s{s.sT1}, 16
        s_add_u32 s{s.sT1}, s{s.sT1}, {kv8}
        s_add_u32 s{s.sT2}, s{s.sHead}, {vi}
        s_mul_i32 s{s.sT2}, s{s.sT2}, 5462
        s_lshr_b32 s{s.sT2}, s{s.sT2}, 16
        s_add_u32 s{s.sT2}, s{s.sT2}, 8
        v_lshrrev_b32 v{s.vT0}, 4, v{s.vLane}
        v_mov_b32 v{s.vT1}, s{s.sT0}
        v_mov_b32 v{s.vT2}, s{s.sT1}
        v_cmp_eq_u32 vcc, 1, v{s.vT0}
        s_nop 1
        v_cndmask_b32 v{s.vT1}, v{s.vT1}, v{s.vT2}, vcc
        v_mov_b32 v{s.vT2}, s{s.sT2}
        v_cmp_le_u32 vcc, 2, v{s.vT0}
        s_nop 1
        v_cndmask_b32 v{s.vT1}, v{s.vT1}, v{s.vT2}, vcc
        v_cmp_le_u32 vcc, 3, v{s.vT0}
        s_nop 1
        v_cndmask_b32 v{s.vT1}, v{s.vT1}, {'0' if branch==1 else 'v%d'%s.vT1}, vcc
        v_lshlrev_b32 v{s.vT1}, 11, v{s.vT1}
        v_and_b32 v{s.vT2}, 15, v{s.vLane}
        v_lshlrev_b32 v{s.vT2}, 7, v{s.vT2}
        v_add_u32 v{s.vT1}, v{s.vT1}, v{s.vT2}
        s_mov_b32 s{s.sT0}, {OFF_FL}
        """)
        s.poll(L)
    def poll(self, L):
        a=self.a; s=self
        R = [164, 165, 166]
        a(f"""
        s_mov_b32 s{s.sT3}, 0
        s_waitcnt vmcnt(0)
        buffer_load_dword v{R[0]}, v{s.vT1}, s[12:15], s{s.sT0} offen sc1
        s_sleep 2
        buffer_load_dword v{R[1]}, v{s.vT1}, s[12:15], s{s.sT0} offen sc1
        s_sleep 2
        {L}:
        """)
        for i in range(3):
            a(f"""
            buffer_load_dword v{R[(i+2)%3]}, v{s.vT1}, s[12:15], s{s.sT0} offen sc1
            s_waitcnt vmcnt(2)
            v_cmp_ne_u32 vcc, s47, v{R[i]}
            s_nop 3
            s_cmp_eq_u64 vcc, 0
            s_cbranch_scc1 {L}_ok
            s_sleep 1
            """)
        a(f"""
        s_add_u32 s{s.sT3}, s{s.sT3}, 1
        s_cmp_lt_u32 s{s.sT3}, 0x20000
        s_cbranch_scc1 {L}
        {L}_ok:
        """)
    def kv_dma(self, step):
        a=self.a; s=self
        for i in range(10):
            lo, hi = 4*i, 4*i+3
            if lo >= 38: break
            L=None
            if hi >= 38:
                L = a.uid("kd"); a(f"s_cmp_ge_u32 s{s.sW}, {38-lo}\ns_cbranch_scc1 {L}")
            base = lo*1024 + step*CH
            a(f"s_lshl_b32 s{s.sT0}, s{s.sW}, 10")
            if hi < 19: a(f"s_add_u32 s{s.sT0}, s{s.sT0}, {base}")
            elif lo >= 19: a(f"s_add_u32 s{s.sT0}, s{s.sT0}, {base + 4*CH - 19*1024}")
            else:
                a(f"s_cmp_ge_u32 s{s.sW}, {19-lo}\ns_cselect_b32 s{s.sT1}, {4*CH-19*1024}, 0\ns_add_u32 s{s.sT0}, s{s.sT0}, s{s.sT1}\ns_add_u32 s{s.sT0}, s{s.sT0}, {base}")
            a(f"s_mov_b32 m0, s{s.sT0}\ns_add_u32 s{s.sT0}, s{s.sT0}, s{s.sKVB}")
            a(f"buffer_load_dwordx4 v{s.vOffQ}, s[12:15], s{s.sT0} offen sc1 lds")
            if L: a(f"{L}:")
    def service_main(self):
        a=self.a; s=self; name=s.name
        vT0,vT1,vT2,vT3,vLane = s.vT0,s.vT1,s.vT2,s.vT3,s.vLane
        vKV = 68; vPK = 100
        vOffKV = 6
        a(f"""
        v_and_b32 v{vT1}, 31, v{vLane}
        v_lshrrev_b32 v{vT2}, 5, v{vLane}
        v_lshlrev_b32 v{vT0}, 4, v{vT1}
        v_mul_u32_u24 v{vOffKV}, 320, v{vT2}
        v_add_u32 v{vOffKV}, v{vOffKV}, v{vT0}
        v_cmp_gt_u32 vcc, 19, v{vT1}
        v_mov_b32 v{vT0}, {BIG}
        s_nop 0
        v_cndmask_b32 v{vOffKV}, v{vT0}, v{vOffKV}, vcc
        v_cmp_gt_u32 vcc, 32, v{vLane}
        s_nop 1
        v_cndmask_b32 v{s.vOffR}, v{vT0}, v{s.vL4}, vcc
        s_mul_i32 s{s.sKV}, s{s.sHead}, {128*640}
        s_mul_i32 s{s.sT0}, s{s.sW}, {32*640}
        s_add_u32 s{s.sKV}, s{s.sKV}, s{s.sT0}
        """)
        a(f"""
        s_lshl_b32 s{s.sT0}, s{s.sHead}, 13
        s_lshl_b32 s{s.sT1}, s{s.sW}, 11
        s_add_u32 s{s.sT0}, s{s.sT0}, s{s.sT1}
        s_add_u32 s{s.sT1}, s{s.sT0}, {OFF_KNR}
        s_add_u32 s{s.sT0}, s{s.sT0}, {OFF_KNM}
        buffer_load_dwordx4 v[12:15], v{s.vOffQ}, s[12:15], s{s.sT0} offen sc1
        buffer_load_dwordx4 v[16:19], v{s.vOffQ}, s[12:15], s{s.sT0} offen offset:1024 sc1
        buffer_load_dwordx4 v[20:23], v{s.vOffQ}, s[12:15], s{s.sT1} offen sc1
        buffer_load_dwordx4 v[24:27], v{s.vOffQ}, s[12:15], s{s.sT1} offen offset:1024 sc1
        """)
        s.kv_dma(0)
        a("""
        s_waitcnt vmcnt(9)
        v_max_u32 v12, v12, v13
        v_max_u32 v20, v20, v21
        v_max3_u32 v12, v12, v14, v15
        v_max3_u32 v20, v20, v22, v23
        v_max3_u32 v12, v12, v16, v17
        v_max3_u32 v20, v20, v24, v25
        v_max3_u32 v12, v12, v18, v19
        v_max3_u32 v20, v20, v26, v27
        s_nop 1
        """)
        for k in (1,2,4,8):
            a(f"v_max_u32_dpp v12, v12, v12 row_ror:{k} row_mask:0xf bank_mask:0xf")
            a(f"v_max_u32_dpp v20, v20, v20 row_ror:{k} row_mask:0xf bank_mask:0xf\ns_nop 0")
        a(f"""
        v_lshrrev_b32 v{vT0}, 4, v{vLane}
        s_lshl_b32 s{s.sT0}, s{s.sW}, 2
        v_add_u32 v{vT0}, s{s.sT0}, v{vT0}
        v_lshlrev_b32 v{vT0}, 3, v{vT0}
        v_add_u32 v{vT0}, {KCELL}, v{vT0}
        v_mov_b32 v13, v20
        ds_write_b64 v{vT0}, v[12:13]
        s_waitcnt lgkmcnt(0)
        s_barrier
        """)
        a("s_waitcnt vmcnt(0)\ns_barrier")
        s.kv_dma(1)
        s.read_flag()
        a(f"s_cbranch_scc0 {name}_sfb")
        a(f"{name}_sfast:")
        def kv_loads(g0, n):
            if "nokv" in s.dbg: return
            for g in range(n):
                a(f"s_add_u32 s{s.sT0}, s{s.sKV}, {OFF_PK + (g0+g)*640}")
                a(f"buffer_load_dwordx4 {v(vPK+8*g,4)}, v{vOffKV}, s[12:15], s{s.sT0} offen sc1")
                a(f"s_add_u32 s{s.sT0}, s{s.sKV}, {OFF_VA + (g0+g)*640}")
                a(f"buffer_load_dwordx4 {v(vPK+8*g+4,4)}, v{vOffKV}, s[12:15], s{s.sT0} offen sc1")
        def kv_mm(n, first):
            if "nokv" in s.dbg: return
            for g in range(n):
                C = "0" if (first and g==0) else v(vKV,16)
                a(f"v_mfma_f32_32x32x16_bf16 {v(vKV,16)}, {v(vPK+8*g,4)}, {v(vPK+8*g+4,4)}, {C}")
        s.wait_flags(1, "a")
        kv_loads(0, 8)
        s.kv_dma(2)
        a("s_waitcnt vmcnt(9)")
        kv_mm(8, True)
        kv_loads(8, 8)
        a("s_barrier")
        s.kv_dma(3)
        a("s_waitcnt vmcnt(9)")
        kv_mm(8, False)
        kv_loads(16, 8)
        a("s_waitcnt vmcnt(0)")
        kv_mm(8, False)
        kv_loads(24, 8)
        a(f"""
        s_lshl_b32 s{s.sQt}, s{s.sQb}, 3
        s_lshl_b32 s{s.sT0}, s{s.sW}, 1
        s_add_u32 s{s.sQt}, s{s.sQt}, s{s.sT0}
        s_lshl_b32 s{s.sT0}, s{s.sHead}, 6
        s_add_u32 s{s.sT0}, s{s.sT0}, s{s.sQt}
        s_lshl_b32 s{s.sOM}, s{s.sT0}, 10
        s_lshl_b32 s{s.sOR}, s{s.sT0}, 7
        s_add_u32 s{s.sT0}, s{s.sOM}, {OFF_PQM}
        s_add_u32 s{s.sT1}, s{s.sOR}, {OFF_PQR}
        buffer_load_dwordx4 v[12:15], v{s.vOffQ}, s[12:15], s{s.sT0} offen sc1
        buffer_load_dwordx4 v[16:19], v{s.vOffQ}, s[12:15], s{s.sT0} offen offset:1024 sc1
        buffer_load_dword v20, v{s.vL4}, s[12:15], s{s.sT1} offen sc1
        buffer_load_dword v22, v{s.vL4}, s[12:15], s{s.sT1} offen offset:128 sc1
        s_lshl_b32 s{s.sT0}, s{s.sQt}, 7
        s_add_u32 s{s.sT0}, s{s.sT0}, {OFF_G}
        buffer_load_dword v30, v{s.vL4}, s[12:15], s{s.sT0} offen sc1
        buffer_load_dword v31, v{s.vL4}, s[12:15], s{s.sT0} offen offset:128 sc1
        s_waitcnt vmcnt(0)
        """)
        kv_mm(8, False)
        a(f"""
        v_and_b32 v{vT1}, 31, v{vLane}
        v_lshrrev_b32 v{vT2}, 5, v{vLane}
        v_mul_u32_u24 v{vT2}, 20, v{vT2}
        v_add_u32 v{vT2}, v{vT2}, v{vT1}
        v_mul_u32_u24 v7, 48, v{vT2}
        v_add_u32 v7, {KVP}, v7
        v_cmp_gt_u32 vcc, 20, v{vT1}
        v_mov_b32 v{vT0}, 0x10000000
        s_mul_i32 s{s.sT0}, s{s.sW}, 1920
        v_cndmask_b32 v7, v{vT0}, v7, vcc
        v_add_u32 v{vT0}, s{s.sT0}, v7
        s_nop 7
        s_nop 3
        """)
        for qd in range(3): a(f"ds_write_b128 v{vT0}, {v(vKV+4*qd,4)} offset:{16*qd}")
        a("s_waitcnt lgkmcnt(0)")
        if "nol" not in s.dbg: a("s_barrier")
        for qd in range(3):
            for w in range(4): a(f"ds_read_b128 {v(vPK+16*qd+4*w,4)}, v7 offset:{w*1920+qd*16}")
        a("s_waitcnt lgkmcnt(0)")
        for qd in range(3):
            b = vPK+16*qd
            for i in range(4):
                a(f"v_add_f32 v{b+i}, v{b+i}, v{b+4+i}")
                a(f"v_add_f32 v{b+8+i}, v{b+8+i}, v{b+12+i}")
            for i in range(4): a(f"v_add_f32 v{vKV+4*qd+i}, v{b+i}, v{b+8+i}")
        for p in range(4): a(f"v_cvt_pk_bf16_f32 v{24+p}, v{vKV+2*p}, v{vKV+2*p+1}")
        a(f"""
        v_cvt_pk_bf16_f32 v{vT0}, v{vKV+8}, v{vKV+9}
        v_cmp_gt_u32 vcc, 32, v{vLane}
        v_mov_b32 v29, 0
        v_mov_b32 v21, 0
        v_mov_b32 v23, 0
        v_cndmask_b32 v28, 0, v{vT0}, vcc
        v_cndmask_b32 v20, 0, v20, vcc
        v_cndmask_b32 v22, 0, v22, vcc
        s_nop 1
        v_mfma_f32_32x32x16_bf16 v[100:115], v[24:27], v[12:15], 0
        v_mfma_f32_32x32x16_bf16 v[116:131], v[24:27], v[16:19], 0
        v_mfma_f32_32x32x8_bf16 v[100:115], v[28:29], v[20:21], v[100:115]
        v_mfma_f32_32x32x8_bf16 v[116:131], v[28:29], v[22:23], v[116:131]
        s_nop 15
        s_nop 3
        """)
        s.norm_store(100, OFF_OAM, OFF_OAR, True, s.sOM, s.sOR, 30 if s.full else None)
        a(f"s_add_u32 s{s.sOM}, s{s.sOM}, 1024\ns_add_u32 s{s.sOR}, s{s.sOR}, 128")
        s.norm_store(116, OFF_OAM, OFF_OAR, True, s.sOM, s.sOR, 31 if s.full else None)
        if s.full:
            s.p45_ids()
            s.w_patterns()
            a(f"""
            s_and_b32 s{s.sT2}, s{s.sW}, 1
            s_mul_i32 s{s.sT2}, s{s.sT2}, {WQ[1]}
            s_lshr_b32 s{s.sT3}, s{s.sW}, 1
            s_mul_i32 s{s.sT3}, s{s.sT3}, {WQ[2]}
            s_add_u32 s74, s{s.sT2}, s{s.sT3}
            """)
        a("s_waitcnt vmcnt(0)")
        if "nol" not in s.dbg: a("s_barrier")
        if s.full:
            L = a.uid("sv")
            a(f"s_cmp_lg_u32 s{s.sW}, 0\ns_cbranch_scc1 {L}")
            s.set_fl2(OFF_FL2A)
            a(f"{L}:")
            L = a.uid("sv")
            a(f"s_cmp_gt_u32 s{s.sW}, 1\ns_cbranch_scc1 {L}")
            s.w_quarter_dma("s[84:87]", s.sW, 74)
            a(f"{L}:")
            s.w_quarter_to_regs("s[96:99]", s.sW)
            s.wait_fl2(OFF_FL2A, "a")
        if "nol" not in s.dbg: a("s_barrier")
        if s.full:
            a(f"""
            v_sub_f32 v30, 1.0, v30
            v_sub_f32 v31, 1.0, v31
            s_lshl_b32 s{s.sT0}, s{s.sW}, 8
            s_add_u32 s{s.sT0}, s{s.sT0}, {GCELL}
            v_add_u32 v{vT0}, s{s.sT0}, v{s.vL4}
            s_mov_b64 exec, 0xffffffff
            ds_write_b32 v{vT0}, v30
            ds_write_b32 v{vT0}, v31 offset:128
            s_mov_b64 exec, -1
            """)
            L = a.uid("sv")
            a(f"s_cmp_lt_u32 s{s.sW}, 2\ns_cbranch_scc1 {L}")
            s.w_quarter_dma("s[84:87]", s.sW, 74)
            a(f"{L}:")
        if s.full: a("s_waitcnt lgkmcnt(0)")
        a("s_barrier")
        a("s_barrier")
        if s.full:
            L = a.uid("sv")
            a(f"s_cmp_lt_u32 s{s.sW}, 2\ns_cbranch_scc1 {L}\ns_waitcnt vmcnt(0)\n{L}:")
        a("s_barrier")
        if s.full:
            L = a.uid("sv")
            a(f"s_cmp_lg_u32 s{s.sW}, 0\ns_cbranch_scc1 {L}")
            s.set_fl2(OFF_FL2B)
            a(f"{L}:")
            a(f"""
            s_mov_b32 s75, {WQB[0]}
            s_cmp_eq_u32 s{s.sW}, 1
            s_cselect_b32 s75, {WQB[1]}, s75
            s_cmp_eq_u32 s{s.sW}, 2
            s_cselect_b32 s75, {WQB[2]}, s75
            s_cmp_eq_u32 s{s.sW}, 3
            s_cselect_b32 s75, {WQB[3]}, s75
            """)
            L = a.uid("sv")
            a(f"s_cmp_eq_u32 s{s.sW}, 3\ns_cbranch_scc1 {L}")
            s.w_regs_to_lds(75)
            a(f"{L}:")
            a("s_barrier")
            L = a.uid("sv")
            a(f"s_cmp_lg_u32 s{s.sW}, 3\ns_cbranch_scc1 {L}")
            s.w_regs_to_lds(75)
            a(f"{L}:")
            a("s_waitcnt lgkmcnt(0)")
            s.wait_fl2(OFF_FL2B, "b")
            a("s_barrier")
            a("s_barrier")
            a("s_barrier")
    def service_fallback(self):
        a=self.a; s=self; name=s.name
        a(f"{name}_sfb:")
        s.kv_dma(2); s.kv_dma(3)
        a("s_waitcnt vmcnt(0)\ns_barrier")
        a(f"s_branch {name}_sfast")
def prefetch(a, q, name, dbg):
    vT0,vT1,vT2,vLane = q.vT0,q.vT1,q.vT2,q.vLane
    D = 160
    if "pfcode" in dbg:
        a(f"""
        s_getpc_b64 s[76:77]
        {name}_pc:
        s_sub_u32 s76, s76, {name}_pc-{name}
        s_subb_u32 s77, s77, 0
        s_lshl_b32 s{q.sT0}, s{q.sW}, 13
        v_lshlrev_b32 v{vT0}, 7, v{vLane}
        v_add_u32 v{vT0}, s{q.sT0}, v{vT0}
        v_min_u32 v{vT0}, {name}_end-{name}, v{vT0}
        global_load_dword v{D}, v{vT0}, s[76:77]
        """)
    if "pfws" in dbg:
        a(f"""
        s_cmp_lg_u32 s{q.sW}, 7
        s_cbranch_scc1 {name}_pfd
        v_lshlrev_b32 v{vT1}, 21, v{vLane}
        buffer_load_dword v{D+1}, v{vT1}, s[12:15], 0 offen
        v_lshlrev_b32 v{vT1}, 19, v{vLane}
        buffer_load_dword v{D+2}, v{vT1}, s[88:91], 0 offen
        buffer_load_dword v{D+3}, v{vT1}, s[84:87], 0 offen
        buffer_load_dword v{D+4}, v{vT1}, s[96:99], 0 offen
        {name}_pfd:
        """)
def gen_f1(name="f1_kernel", stamps=False, dbg="", full=False):
    a = Asm()
    q = QKVF(a, name, "sc1"); q.deferred = []
    t = ATT(a, name); t.stamps = stamps; t.dbg = dbg; t.full = full
    def stamp(nm):
        if stamps and nm in STAMPS: a(f"s_memtime s[52:53]\ns_waitcnt lgkmcnt(0)\nv_writelane_b32 v167, s52, {STAMPS.index(nm)}")
    t.stamp = stamp; q.stamp = stamp
    a(f"""
    s_cmp_ge_u32 s2, 256
    s_cbranch_scc1 {name}_end
    s_load_dwordx2 s[8:9], s[0:1], 0
    s_load_dwordx2 s[16:17], s[0:1], 8
    s_load_dwordx2 s[18:19], s[0:1], 32
    s_load_dwordx2 s[4:5], s[0:1], 48
    s_load_dwordx2 s[92:93], s[0:1], 64
    s_load_dwordx2 s[12:13], s[0:1], 72
    s_load_dwordx2 s[84:85], s[0:1], 16
    s_load_dwordx2 s[96:97], s[0:1], 40
    s_load_dwordx2 s[88:89], s[0:1], 56
    s_memtime s[50:51]
    s_memrealtime s[66:67]
    s_mov_b32 s86, {576*576*2}
    s_mov_b32 s87, 0x00020000
    s_mov_b32 s98, {576*576*2}
    s_mov_b32 s99, 0x00020000
    s_mov_b32 s90, {S*D*2}
    s_mov_b32 s91, 0x00020000
    s_mov_b32 s10, {S*D*2}
    s_mov_b32 s11, 0x00020000
    s_mov_b32 s14, {WS_END}
    s_mov_b32 s15, 0x00020000
    s_mov_b32 s6, 1152
    s_mov_b32 s7, 0x00020000
    s_mov_b32 s94, 256
    s_mov_b32 s95, 0x00020000
    """)
    q.setup()
    a(f"s_cmp_lt_u32 s{q.sW}, 8\ns_cbranch_scc1 {name}_comp")
    if "noprio" not in dbg: a("s_setprio 1")
    a(f"s_sub_u32 s{q.sW}, s{q.sW}, 8")
    q.loader_x_setup()
    a("s_waitcnt lgkmcnt(0)")
    a(f"""
    s_cmp_lg_u32 s2, 0
    s_cbranch_scc1 {name}_nonce1
    s_cmp_lg_u32 s{q.sW}, 0
    s_cbranch_scc1 {name}_nonce1
    s_memrealtime s[80:81]
    s_waitcnt lgkmcnt(0)
    s_or_b32 s80, s80, 1
    v_mov_b32 v2, s80
    v_mov_b32 v3, 0
    s_mov_b64 exec, 1
    buffer_store_dword v2, v3, s[92:95], 0 offen sc1
    s_mov_b64 exec, -1
    {name}_nonce1:
    """)
    q.loader4(name+"_ld", name+"_svc2")
    a(f"{name}_svc2:")
    a(f"s_mov_b32 s46, s{q.sJt}\ns_mov_b32 s48, s{q.sR}")
    t.ids()
    a(f"""
    v_mov_b32 v3, 0
    s_mov_b32 s30, 0
    {name}_npoll:
    buffer_load_dword v2, v3, s[92:95], 0 offen sc1
    s_waitcnt vmcnt(0)
    v_readfirstlane_b32 s47, v2
    s_nop 3
    s_cmp_lg_u32 s47, 0
    s_cbranch_scc1 {name}_ndone
    s_add_u32 s30, s30, 1
    s_cmp_lt_u32 s30, 0x40000
    s_cbranch_scc0 {name}_ndone
    s_sleep 8
    s_branch {name}_npoll
    {name}_ndone:
    """)
    a("s_barrier")
    a("s_barrier")
    a(f"""
    s_cmp_lg_u32 s{q.sW}, 0
    s_cbranch_scc1 {name}_nopoll
    v_mov_b32 v2, s47
    s_lshl_b32 s29, s46, 4
    s_add_u32 s29, s29, s48
    s_lshl_b32 s29, s29, 7
    s_add_u32 s29, s29, {OFF_FL}
    v_mov_b32 v3, 0
    s_mov_b64 exec, 1
    buffer_store_dword v2, v3, s[12:15], s29 offen sc1
    s_mov_b64 exec, -1
    """)
    t.wait_flags(0, "b")
    a(f"{name}_nopoll:\ns_barrier")
    t.service_main()
    a("s_endpgm")
    t.service_fallback()
    a(f"{name}_comp:\ns_waitcnt lgkmcnt(0)")
    prefetch(a, q, name, dbg)
    q.read_addrs()
    for i in range(64): a(f"v_mov_b32 v{q.vD+i}, 0")
    a(f"""
    s_lshl_b32 s{q.sT0}, s{q.sIsV}, 1
    s_add_u32 s{q.sT0}, s{q.sT0}, s{q.sCh}
    s_cmp_eq_u32 s{q.sT0}, 1
    s_cbranch_scc1 {name}_v01
    s_cmp_eq_u32 s{q.sT0}, 2
    s_cbranch_scc1 {name}_v10
    s_cmp_eq_u32 s{q.sT0}, 3
    s_cbranch_scc1 {name}_v11
    """)
    for (isv,ch) in ((0,0),(0,1),(1,0),(1,1)):
        if (isv,ch) != (0,0): a(f"{name}_v{isv}{ch}:")
        q.gemm3(isv, ch, f"{name}_g{isv}{ch}")
        stamp('gemm_end')
        q.phi_consts()
        if isv: q.v_consts()
        (q.v_epilogue if isv else q.q_epilogue)(f"{name}_e{isv}{ch}", ch)
        if (isv,ch) != (1,1): a(f"s_branch {name}_c2")
    a(f"{name}_c2:")
    stamp('epi_end')
    t.compute_pre()
    a("s_waitcnt vmcnt(0)")
    stamp('drained')
    a("s_barrier")
    stamp('B10')
    a("s_barrier")
    stamp('flags')
    t.compute_main()
    if stamps:
        a("s_waitcnt vmcnt(0)")
        stamp('end')
        a("s_memrealtime s[68:69]\ns_waitcnt lgkmcnt(0)")
        a("v_writelane_b32 v167, s50, 0\nv_writelane_b32 v167, s66, 1\nv_writelane_b32 v167, s68, 15")
        a("s_lshl_b32 s28, s2, 3\ns_add_u32 s28, s28, s24\ns_lshl_b32 s28, s28, 6\ns_add_u32 s28, s28, 0x2000000\ns_mov_b32 s14, 0x4000000")
        a("v_and_b32 v2, 63, v0\nv_lshlrev_b32 v3, 2, v2\nv_cmp_gt_u32 vcc, 16, v2\nv_mov_b32 v4, 0x7f000000\ns_nop 0\nv_cndmask_b32 v3, v4, v3, vcc")
        if "dbgout" not in dbg:
            a("buffer_store_dword v167, v3, s[12:15], s28 offen")
        else:
            a(f"""
            s_cmp_lg_u32 s2, 37
            s_cbranch_scc1 {name}_nodbg
            s_cmp_lg_u32 s24, 0
            s_cbranch_scc1 {name}_nodbg
            v_readlane_b32 s28, v167, 0
            v_readlane_b32 s29, v167, 1
            s_nop 3
            v_subrev_u32 v5, s28, v167
            v_subrev_u32 v6, s29, v167
            v_cmp_eq_u32 vcc, 15, v2
            s_nop 1
            v_cndmask_b32 v5, v5, v6, vcc
            v_lshlrev_b32 v3, 2, v2
            v_cmp_lt_u32 vcc, 1, v2
            v_cmp_gt_u32 s[28:29], 16, v2
            s_nop 3
            s_and_b64 vcc, vcc, s[28:29]
            v_mov_b32 v4, 0x7f000000
            v_cndmask_b32 v3, v4, v3, vcc
            buffer_store_dword v5, v3, s[92:95], 0 offen
            {name}_nodbg:
            """)
    if "dbl" in dbg:
        a(f"""
        s_memrealtime s[68:69]
        s_waitcnt lgkmcnt(0)
        s_sub_u32 s28, s68, s66
        s_add_u32 s28, s28, s68
        {name}_spin:
        s_memrealtime s[68:69]
        s_waitcnt lgkmcnt(0)
        s_sub_u32 s29, s68, s28
        s_cmp_lt_i32 s29, 0
        s_cbranch_scc1 {name}_spin
        """)
    if "dblq" in dbg:
        pass
    a("s_endpgm")
    t.compute_fallback()
    for f in q.deferred: f()
    a(f"{name}_end:\ns_endpgm")
    return kernel_head(name) + a.text() + kernel_desc(name, 168, sgpr=100)
```

```python
from asmlib import *
from model import *
SLOT = 49152
LDS_K1D = 3*SLOT
HS_KVB = 8*CH
HS_V = 128*640
LOG2E = 0x3fb8aa3b
QSC = int(np.float32(QSCALE).view(np.uint32))
EPS = 0x358637bd
BIG = 0x7f000000
def jt_params(jt):
    if jt < 5: return (0, 432*jt, 216, 8, 0)
    if jt == 5: return (0, 2160, 72, 3, 0)
    if jt < 8: return (1, 432*jt-2304, 216, 8, 0)
    if jt < 10: return (0, 2304+432*(jt-8), 216, 8, 0)
    if jt == 10: return (0, 3168, 144, 5, 1152)
    return (1, 432*(jt-8), 216, 8, 0)
class QKV:
    def __init__(self, a, name, sc=""):
        self.a=a; self.name=name; self.sc=sc; self.dbg=""
        s=self
        s.vLane,s.vT0,s.vT1,s.vT2,s.vT3,s.vT4,s.vT5 = 1,2,3,4,5,6,7
        s.vWG = 8
        s.vXG = 10
        s.vGD, s.vGW, s.vGA = 11, 26, 27
        s.vWR = [12,13,14,15]
        s.vXR = [16,17,18,19]
        s.vL16,s.vTok,s.vHf,s.vL4 = 20,21,22,23
        s.vXF = [28, 32]
        s.vWF = [36, 52]
        s.vD = 68
        s.vE = 132
        s.NV = 148
        s.sR,s.sJt,s.sW,s.sRt,s.sCh,s.sT32 = 22,23,24,25,26,27
        s.sT0,s.sT1,s.sT2,s.sT3,s.sT4 = 28,29,30,31,32
        s.sM,s.sSlot,s.sSlotM,s.sXoff,s.sCn,s.sC,s.sDm = 33,34,35,36,37,38,39
        s.sMask = 40
        s.sMask2 = 70
        s.sJ8,s.sIsV = 42,43
        s.sMat1,s.sS1,s.sSplit,s.sN1,s.sS2 = 44,45,46,47,48
        s.sKind,s.sHead,s.sBase = 49,64,65
        s.sWA, s.sWB = 16, 18
    def st(self, instr):
        if "nost" in self.dbg: return
        self.a(instr + (" "+self.sc if self.sc else ""))
    def setup(self):
        a=self.a; s=self
        vLane,vT0,vT1,vT2,vT3,vT4,vT5 = s.vLane,s.vT0,s.vT1,s.vT2,s.vT3,s.vT4,s.vT5
        a(f"""
        s_and_b32 s{s.sT0}, s2, 7
        s_lshr_b32 s{s.sT1}, s2, 3
        s_and_b32 s{s.sR}, s{s.sT0}, 1
        s_lshl_b32 s{s.sR}, s{s.sR}, 3
        s_and_b32 s{s.sT2}, s{s.sT1}, 7
        s_add_u32 s{s.sR}, s{s.sR}, s{s.sT2}
        s_lshr_b32 s{s.sJt}, s{s.sT0}, 1
        s_lshl_b32 s{s.sJt}, s{s.sJt}, 2
        s_lshr_b32 s{s.sT2}, s{s.sT1}, 3
        s_add_u32 s{s.sJt}, s{s.sJt}, s{s.sT2}
        s_and_b32 s{s.sJ8}, s{s.sJt}, 7
        s_lshr_b32 s{s.sIsV}, s{s.sJt}, 3
        v_lshrrev_b32 v{vT0}, 6, v0
        v_and_b32 v{vLane}, 63, v0
        v_readfirstlane_b32 s{s.sW}, v{vT0}
        v_lshlrev_b32 v{s.vL16}, 4, v{vLane}
        v_and_b32 v{s.vTok}, 31, v{vLane}
        v_lshrrev_b32 v{s.vHf}, 5, v{vLane}
        v_lshlrev_b32 v{s.vL4}, 2, v{s.vTok}
        s_and_b32 s{s.sRt}, s{s.sW}, 3
        s_lshr_b32 s{s.sCh}, s{s.sW}, 2
        s_lshl_b32 s{s.sT32}, s{s.sR}, 2
        s_add_u32 s{s.sT32}, s{s.sT32}, s{s.sRt}
        """)
        a(f"""
        v_lshrrev_b32 v{vT0}, 3, v{vLane}
        s_lshl_b32 s{s.sT0}, s{s.sW}, 3
        v_add_u32 v{vT0}, s{s.sT0}, v{vT0}
        v_lshrrev_b32 v{vT1}, 1, v{vT0}
        v_and_b32 v{vT1}, 7, v{vT1}
        v_and_b32 v{vT2}, 7, v{vLane}
        v_xor_b32 v{vT1}, v{vT1}, v{vT2}
        v_lshlrev_b32 v{vT1}, 4, v{vT1}
        s_lshl_b32 s{s.sT0}, s{s.sR}, 7
        v_add_u32 v{vT0}, s{s.sT0}, v{vT0}
        v_mul_u32_u24 v{vT0}, 1152, v{vT0}
        v_add_u32 v{s.vXG}, v{vT0}, v{vT1}
        s_lshl_b32 s{s.sM}, s{s.sW}, 10
        """)
        a(f"""
        s_mul_i32 s{s.sS1}, s{s.sJ8}, 432
        s_mov_b32 s{s.sSplit}, 216
        s_mov_b32 s{s.sN1}, 8
        s_mov_b32 s{s.sS2}, 0
        s_mov_b32 s{s.sMat1}, 0
        s_cmp_eq_u32 s{s.sIsV}, 0
        s_cbranch_scc0 {s.name}_pv
        s_cmp_gt_u32 s{s.sJ8}, 5
        s_cbranch_scc0 {s.name}_pq1
        s_sub_u32 s{s.sS1}, s{s.sS1}, 2304
        s_mov_b32 s{s.sMat1}, 1
        s_branch {s.name}_pd
        {s.name}_pq1:
        s_cmp_eq_u32 s{s.sJ8}, 5
        s_cbranch_scc0 {s.name}_pd
        s_mov_b32 s{s.sSplit}, 72
        s_mov_b32 s{s.sN1}, 3
        s_branch {s.name}_pd
        {s.name}_pv:
        s_cmp_gt_u32 s{s.sJ8}, 2
        s_cbranch_scc0 {s.name}_pv1
        s_mov_b32 s{s.sMat1}, 1
        s_cmp_gt_u32 s{s.sJ8}, 5
        s_cbranch_scc1 {s.name}_pv2
        s_add_u32 s{s.sS1}, s{s.sS1}, 1152
        s_cmp_eq_u32 s{s.sJ8}, 5
        s_cbranch_scc0 {s.name}_pd
        s_mov_b32 s{s.sSplit}, 72
        s_mov_b32 s{s.sN1}, 3
        s_mov_b32 s{s.sS2}, 1152
        s_branch {s.name}_pd
        {s.name}_pv2:
        s_sub_u32 s{s.sS1}, s{s.sS1}, 1152
        s_branch {s.name}_pd
        {s.name}_pv1:
        s_add_u32 s{s.sS1}, s{s.sS1}, 2304
        s_cmp_eq_u32 s{s.sJ8}, 2
        s_cbranch_scc0 {s.name}_pd
        s_mov_b32 s{s.sSplit}, 144
        s_mov_b32 s{s.sN1}, 5
        s_mov_b32 s{s.sS2}, 2304
        {s.name}_pd:
        """)
    def setup_w(self):
        a=self.a; s=self
        vLane,vT0,vT1,vT2,vT3,vT4,vT5 = s.vLane,s.vT0,s.vT1,s.vT2,s.vT3,s.vT4,s.vT5
        a(f"""
        s_lshl_b32 s{s.sT0}, s{s.sW}, 1
        v_add_u32 v{vT0}, s{s.sT0}, v{s.vHf}
        v_and_b32 v{vT1}, 3, v{vT0}
        v_lshrrev_b32 v{vT2}, 2, v{s.vTok}
        v_xor_b32 v{vT1}, v{vT2}, v{vT1}
        v_and_b32 v{vT2}, 3, v{s.vTok}
        v_lshlrev_b32 v{vT2}, 4, v{vT2}
        v_lshlrev_b32 v{vT3}, 6, v{vT1}
        v_add_u32 v{vT3}, v{vT3}, v{vT2}
        v_mov_b32 v{vT4}, 496
        v_cmp_ne_u32 s[{s.sMask}:{s.sMask+1}], v{vT3}, v{vT4}
        s_andn2_b32 s{s.sT0}, s{s.sS1}, 63
        s_lshl_b32 s{s.sT1}, s{s.sN1}, 6
        s_sub_u32 s{s.sT2}, s{s.sS2}, s{s.sT1}
        v_add_u32 v{vT4}, s{s.sT0}, v{vT3}
        v_add_u32 v{vT5}, s{s.sT2}, v{vT3}
        v_cmp_gt_u32 vcc, s{s.sN1}, v{vT1}
        s_nop 1
        v_cndmask_b32 v{vT4}, v{vT5}, v{vT4}, vcc
        v_min_u32 v{vT4}, 3440, v{vT4}
        v_mul_u32_u24 v{vT5}, 3456, v{vT0}
        v_add_u32 v{vT4}, v{vT4}, v{vT5}
        s_cmp_eq_u32 s{s.sMat1}, 0
        s_cselect_b32 s{s.sT0}, s{s.sWB}, s{s.sWA}
        s_cselect_b32 s{s.sT1}, s{s.sWB+1}, s{s.sWA+1}
        v_mov_b32 v{vT5}, s{s.sWA}
        v_mov_b32 v{vT3}, s{s.sT0}
        v_cndmask_b32 v{s.vWG}, v{vT5}, v{vT3}, vcc
        v_mov_b32 v{vT5}, s{s.sWA+1}
        v_mov_b32 v{vT3}, s{s.sT1}
        v_cndmask_b32 v{s.vWG+1}, v{vT5}, v{vT3}, vcc
        v_add_co_u32 v{s.vWG}, vcc, v{s.vWG}, v{vT4}
        s_nop 1
        v_addc_co_u32 v{s.vWG+1}, vcc, 0, v{s.vWG+1}, vcc
        v_and_b32 v{vT0}, 3, v{vLane}
        v_xor_b32 v{vT0}, 7, v{vT0}
        v_lshlrev_b32 v{vT0}, 6, v{vT0}
        v_lshlrev_b32 v{vT1}, 9, v{vLane}
        v_add_u32 v{vT0}, v{vT0}, v{vT1}
        v_add_u32 v{s.vGD}, 48, v{vT0}
        """)
    def dma(self, item, slot, pro=False):
        a=self.a; s=self
        k, i = item[0], int(item[1])
        if not pro and ("no"+k+"dma") in s.dbg:
            a("buffer_load_dword v3, v20, s[8:11], 0 offen"); return
        if k == 'x':
            a(f"s_add_u32 m0, s{s.sM}, {slot + 32768 + i*8192}")
            if i: a(f"s_add_u32 s{s.sT0}, s{s.sXoff}, 73728")
            else: a("s_nop 0")
            a(f"buffer_load_dwordx4 v{s.vXG}, s[8:11], s{s.sT0 if i else s.sXoff} offen lds")
        else:
            a(f"s_add_u32 m0, s{s.sM}, {slot + i*8192}")
            a(f"s_mov_b64 exec, s[{s.sMask}:{s.sMask+1}]")
            a(f"global_load_lds_dwordx4 {v(s.vWG,2)}, off")
            a("s_mov_b64 exec, -1")
            a(f"v_add_co_u32 v{s.vWG}, vcc, 0xd800, v{s.vWG}")
            a(f"s_nop 1")
            a(f"v_addc_co_u32 v{s.vWG+1}, vcc, 0, v{s.vWG+1}, vcc")
    def dma_advance(self):
        a=self.a; s=self
        a(f"s_add_u32 s{s.sXoff}, s{s.sXoff}, 128\ns_add_u32 s{s.sCn}, s{s.sCn}, 1")
    def gate_write_dyn(self, slot):
        a=self.a; s=self
        a(f"""
        s_cmp_eq_u32 s{s.sCn}, 8
        s_cselect_b64 vcc, -1, 0
        v_add_u32 v{s.vT0}, {slot}, v{s.vGD}
        v_cndmask_b32 v{s.vT1}, v{s.vGW}, v{s.vGA}, vcc
        s_and_b32 s{s.sT0}, s{s.sCn}, 7
        s_cmp_eq_u32 s{s.sW}, s{s.sT0}
        s_cselect_b64 exec, -1, 0
        ds_write_b16 v{s.vT0}, v{s.vT1}
        s_mov_b64 exec, -1
        """)
    def read_addrs(self):
        a=self.a; s=self
        vLane,vT0,vT1,vT2,vT3,vT4,vT5 = s.vLane,s.vT0,s.vT1,s.vT2,s.vT3,s.vT4,s.vT5
        E = s.vE
        a(f"""
        v_lshrrev_b32 v{vT0}, 4, v{vLane}
        v_and_b32 v{E}, 1, v{vT0}
        v_lshrrev_b32 v{vT0}, 1, v{vT0}
        v_and_b32 v{vT2}, 15, v{vLane}
        v_lshrrev_b32 v{E+1}, 2, v{vT2}
        v_and_b32 v{E+2}, 3, v{vT2}
        v_lshlrev_b32 v{vT0}, 3, v{vT0}
        v_add_u32 v{vT0}, v{vT0}, v{E+1}
        v_lshlrev_b32 v{E+3}, 9, v{vT0}
        s_and_b32 s{s.sT3}, s{s.sS1}, 63          ; delta1
        s_lshl_b32 s{s.sT4}, s{s.sN1}, 6          ; 64*n1 (delta2 = 0)
        s_lshl_b32 s{s.sT2}, s{s.sSplit}, 1
        s_sub_u32 s{s.sT4}, s{s.sT4}, s{s.sT2}    ; 64 n1 - 2*split
        """)
        def addr_from_cc(vcc_reg, dst):
            a(f"""
            v_lshlrev_b32 v{vT1}, 1, v{vcc_reg}
            v_add_u32 v{vT2}, s{s.sT3}, v{vT1}
            v_add_u32 v{vT1}, s{s.sT4}, v{vT1}
            v_cmp_gt_u32 vcc, s{s.sSplit}, v{vcc_reg}
            s_nop 1
            v_cndmask_b32 v{vT1}, v{vT1}, v{vT2}, vcc
            """)
            fin(vT1, dst)
        def fin(o, dst):
            a(f"""
            v_lshrrev_b32 v{vT2}, 6, v{o}
            v_xor_b32 v{vT2}, v{vT2}, v{E+1}
            v_lshlrev_b32 v{vT2}, 6, v{vT2}
            v_and_b32 v{vT3}, 63, v{o}
            v_add_u32 v{vT2}, v{vT2}, v{vT3}
            v_add_u32 v{dst}, v{vT2}, v{E+3}
            """)
        for tl in range(4):
            if tl < 2:
                a(f"""
                s_lshl_b32 s{s.sT0}, s{s.sCh}, 2
                s_add_u32 s{s.sT0}, s{s.sT0}, {tl}
                s_add_u32 s{s.sT1}, s{s.sT0}, 5
                s_cmp_ge_u32 s{s.sT1}, 6
                s_cselect_b32 s{s.sT2}, 6, 0
                s_sub_u32 s{s.sT1}, s{s.sT1}, s{s.sT2}
                s_mul_i32 s{s.sT0}, s{s.sT0}, 36
                s_mul_i32 s{s.sT1}, s{s.sT1}, 36
                s_add_u32 s{s.sT1}, s{s.sT1}, 20
                v_mov_b32 v{vT4}, s{s.sT0}
                v_mov_b32 v{vT5}, s{s.sT1}
                """)
            else:
                tau = tl
                a(f"v_mov_b32 v{vT4}, {36*tau}\nv_mov_b32 v{vT5}, {36*((tau+5)%6)+20}")
            a(f"""
            v_cmp_eq_u32 vcc, 0, v{E}
            v_lshlrev_b32 v{vT0}, 2, v{E+2}
            s_nop 0
            v_cndmask_b32 v{vT4}, v{vT5}, v{vT4}, vcc
            v_add_u32 v{vT4}, v{vT4}, v{vT0}
            """)
            addr_from_cc(vT4, s.vWR[tl])
            if tl == 2:
                a(f"""
                v_lshlrev_b32 v{vT4}, 2, v{E}
                v_add_u32 v{vT4}, v{vT4}, v{E+2}
                v_mul_u32_u24 v{vT5}, 36, v{vT4}
                v_add_u32 v{vT5}, 16, v{vT5}
                """)
                addr_from_cc(vT5, E+4)
                a(f"v_mov_b32 v{vT1}, 496")
                fin(vT1, E+5)
                a(f"""
                v_cmp_gt_u32 vcc, 6, v{vT4}
                s_nop 1
                v_cndmask_b32 v{E+4}, v{E+5}, v{E+4}, vcc
                s_cmp_eq_u32 s{s.sCh}, 0
                s_cselect_b64 vcc, -1, 0
                v_cndmask_b32 v{s.vWR[2]}, v{E+4}, v{s.vWR[2]}, vcc
                """)
        a(f"""
        v_lshrrev_b32 v{vT0}, 1, v{s.vTok}
        v_and_b32 v{vT0}, 7, v{vT0}
        v_xor_b32 v{vT0}, v{vT0}, v{s.vHf}
        v_lshlrev_b32 v{vT0}, 4, v{vT0}
        s_lshl_b32 s{s.sT0}, s{s.sRt}, 5
        v_add_u32 v{vT1}, s{s.sT0}, v{s.vTok}
        v_lshlrev_b32 v{vT1}, 7, v{vT1}
        v_add_u32 v{vT1}, 32768, v{vT1}
        v_add_u32 v{s.vXR[0]}, v{vT0}, v{vT1}
        v_xor_b32 v{s.vXR[1]}, 32, v{s.vXR[0]}
        v_xor_b32 v{s.vXR[2]}, 64, v{s.vXR[0]}
        v_xor_b32 v{s.vXR[3]}, 96, v{s.vXR[0]}
        """)
    def gemm(self, isv, ch, lbl):
        a=self.a; s=self
        ntile = 4 if ch==0 else 3
        nr = 1 + 2*ntile
        def reads(st, b):
            if "nods" in s.dbg: return
            a(f"ds_read_b128 {v(s.vXF[b],4)}, v{s.vXR[st]}")
            for tl in range(ntile):
                for u in range(2):
                    a(f"ds_read_b64_tr_b16 {v(s.vWF[b]+4*tl+2*u,2)}, v{s.vWR[tl]} offset:{(16*st+4*u)*512}")
        def mm(b):
            if "nomm" in s.dbg: return
            for tl in range(ntile):
                X, W = v(s.vXF[b],4), v(s.vWF[b]+4*tl,4)
                A,B = (X,W) if isv else (W,X)
                a(f"v_mfma_f32_32x32x16_bf16 {v(s.vD+16*tl,16)}, {A}, {B}, {v(s.vD+16*tl,16)}")
        a("s_waitcnt vmcnt(8) lgkmcnt(0)\ns_barrier")
        reads(0,0)
        a(f"s_mov_b32 s{s.sC}, 0")
        a(f"{lbl}_loop:")
        for j in range(3):
            pslot = ((j+2)%3)*SLOT
            for st in range(3):
                reads(st+1, (st+1)&1)
                if not (j == 0 and False):
                    its = (['w1','x1'],['w2'],['w3'])[st]
                    for it in its: s.dma(it, pslot)
                    if st == 2: s.dma_advance()
                a(f"s_waitcnt lgkmcnt({nr})")
                mm(st&1)
            a("s_waitcnt lgkmcnt(0)")
            if j == 2:
                a(f"s_cmp_eq_u32 s{s.sC}, 2\ns_cbranch_scc1 {lbl}_last")
            a("s_waitcnt vmcnt(6)\ns_barrier")
            d = SLOT if j < 2 else -2*SLOT
            for r in s.vWR[:ntile]+s.vXR: a(f"v_add_u32 v{r}, {d & 0xffffffff}, v{r}")
            reads(0, 0)
            if j == 2:
                a(f"""
                s_add_u32 s{s.sC}, s{s.sC}, 1
                """)
            if j == 0:
                a(f"""
                s_cmp_eq_u32 s{s.sC}, 2
                s_cselect_b32 s{s.sT0}, {576*3456}, 0
                v_subrev_co_u32 v{s.vWG}, vcc, s{s.sT0}, v{s.vWG}
                s_nop 1
                v_subbrev_co_u32 v{s.vWG+1}, vcc, 0, v{s.vWG+1}, vcc
                """)
            s.gate_write_dyn(j*SLOT)
            s.dma('x0', j*SLOT); s.dma('w0', j*SLOT)
            mm(1)
        a(f"s_branch {lbl}_loop")
        a(f"{lbl}_last:")
        mm(1)
        a("s_nop 15\ns_nop 3")
    def loader_setup_w(self, lbl):
        a=self.a; s=self
        vLane,vT0,vT1,vT2,vT3,vT4,vT5 = s.vLane,s.vT0,s.vT1,s.vT2,s.vT3,s.vT4,s.vT5
        a(f"""
        s_cmp_eq_u32 s{s.sMat1}, 0
        s_cselect_b32 s72, s{s.sWB}, s{s.sWA}
        s_cselect_b32 s73, s{s.sWB+1}, s{s.sWA+1}
        s_mov_b32 s74, {576*3456}
        s_mov_b32 s75, 0x00020000
        s_mov_b32 s{s.sT3}, 0
        s_mov_b32 s{s.sT4}, 0
        s_cmp_eq_u32 s{s.sN1}, 8
        s_cbranch_scc1 {lbl}_single
        s_cmp_eq_u32 s{s.sMat1}, 1
        s_cbranch_scc1 {lbl}_single
        s_sub_u32 s76, s{s.sWA}, s{s.sWB}
        s_subb_u32 s77, s{s.sWA+1}, s{s.sWB+1}
        s_cmp_lt_i32 s77, 0
        s_cbranch_scc1 {lbl}_neg
        s_cmp_lg_u32 s77, 0
        s_cbranch_scc1 {lbl}_far
        s_cmp_gt_u32 s76, 0xffc00000
        s_cbranch_scc1 {lbl}_far
        s_mov_b32 s{s.sT4}, s76
        s_add_u32 s74, s76, {576*3456}
        s_branch {lbl}_single
        {lbl}_neg:
        s_sub_u32 s76, s{s.sWB}, s{s.sWA}
        s_subb_u32 s77, s{s.sWB+1}, s{s.sWA+1}
        s_cmp_lg_u32 s77, 0
        s_cbranch_scc1 {lbl}_far
        s_cmp_gt_u32 s76, 0xffc00000
        s_cbranch_scc1 {lbl}_far
        s_mov_b32 s72, s{s.sWA}
        s_mov_b32 s73, s{s.sWA+1}
        s_mov_b32 s{s.sT3}, s76
        s_add_u32 s74, s76, {576*3456}
        {lbl}_single:
        s_lshl_b32 s{s.sT0}, s{s.sW}, 1
        v_add_u32 v{vT0}, s{s.sT0}, v{s.vHf}
        v_and_b32 v{vT1}, 3, v{vT0}
        v_lshrrev_b32 v{vT2}, 2, v{s.vTok}
        v_xor_b32 v{vT1}, v{vT2}, v{vT1}
        v_and_b32 v{vT2}, 3, v{s.vTok}
        v_lshlrev_b32 v{vT2}, 4, v{vT2}
        v_lshlrev_b32 v{vT3}, 6, v{vT1}
        v_add_u32 v{vT3}, v{vT3}, v{vT2}
        v_mov_b32 v{vT4}, 496
        v_cmp_ne_u32 s[{s.sMask}:{s.sMask+1}], v{vT3}, v{vT4}
        v_cmp_gt_u32 vcc, s{s.sN1}, v{vT1}            ; lb < n1
        s_andn2_b32 s{s.sT0}, s{s.sS1}, 63
        s_add_u32 s{s.sT0}, s{s.sT0}, s{s.sT3}
        s_lshl_b32 s{s.sT1}, s{s.sN1}, 6
        s_sub_u32 s{s.sT2}, s{s.sS2}, s{s.sT1}
        s_add_u32 s{s.sT2}, s{s.sT2}, s{s.sT4}
        v_add_u32 v{vT4}, s{s.sT0}, v{vT3}
        v_add_u32 v{vT5}, s{s.sT2}, v{vT3}
        v_cndmask_b32 v{vT4}, v{vT5}, v{vT4}, vcc
        v_mul_u32_u24 v{vT5}, 3456, v{vT0}
        v_add_u32 v{s.vWG}, v{vT4}, v{vT5}
        v_and_b32 v{vT0}, 3, v{vLane}
        v_xor_b32 v{vT0}, 7, v{vT0}
        v_lshlrev_b32 v{vT0}, 6, v{vT0}
        v_lshlrev_b32 v{vT1}, 9, v{vLane}
        v_add_u32 v{vT0}, v{vT0}, v{vT1}
        v_add_u32 v{s.vGD}, 48, v{vT0}
        """)
    def loader_chunk_buf(self, slot, c):
        a=self.a; s=self
        a(f"s_mov_b64 exec, s[{s.sMask}:{s.sMask+1}]")
        for k in range(16):
            a(f"s_add_u32 m0, s{s.sM}, {slot + k*2048}")
            a(f"s_mov_b32 s{s.sT0}, {(c*64 + 4*k)*3456}")
            a(f"buffer_load_dwordx4 v{s.vWG}, s[72:75], s{s.sT0} offen lds")
        a("s_mov_b64 exec, -1")
        for k in range(8):
            a(f"s_add_u32 m0, s{s.sM}, {slot + 32768 + k*2048}")
            a(f"s_mov_b32 s{s.sT0}, {c*128 + k*16*1152}")
            a(f"buffer_load_dwordx4 v{s.vXG}, s[8:11], s{s.sT0} offen lds")
    def loader_chunk(self, slot, c, mixed=False):
        a=self.a; s=self
        P = [s.vWG, 24]
        a(f"s_mov_b64 exec, s[{s.sMask}:{s.sMask+1}]")
        for k in range(16):
            a(f"s_add_u32 m0, s{s.sM}, {slot + k*2048}")
            if k == 0: a("s_nop 0")
            else: a(f"v_lshl_add_u64 {v(P[(k-1)&1],2)}, {v(P[(k-1)&1],2)}, 0, s[72:73]")
            a(f"global_load_lds_dwordx4 {v(P[k&1],2)}, off")
        a(f"v_lshl_add_u64 {v(P[1],2)}, {v(P[1],2)}, 0, s[72:73]")
        a("s_mov_b64 exec, -1")
        for k in range(8):
            a(f"s_add_u32 m0, s{s.sM}, {slot + 32768 + k*2048}")
            a(f"s_mov_b32 s{s.sT0}, {c*128 + k*16*1152}")
            a(f"buffer_load_dwordx4 v{s.vXG}, s[8:11], s{s.sT0} offen lds")
    def loader_gate(self, slot, c):
        a=self.a; s=self
        a(f"v_add_u32 v{s.vT0}, {slot}, v{s.vGD}")
        a(f"ds_write_b16 v{s.vT0}, v{s.vD+c}")
    def loader(self, lbl):
        a=self.a; s=self
        n = 24
        for far in (False, True):
            if far:
                a(f"{lbl}_far:")
                s.setup_w()
                a(f"s_mov_b32 s72, {4*3456}\ns_mov_b32 s73, 0")
                a(f"v_lshl_add_u64 v[24:25], {v(s.vWG,2)}, 0, s[72:73]")
                a(f"s_mov_b32 s72, {8*3456}")
            else:
                s.loader_setup_w(lbl)
            chunk = s.loader_chunk if far else s.loader_chunk_buf
            a(f"v_lshlrev_b32 v{s.vT0}, 1, v{s.vLane}")
            for c in range(9): a(f"buffer_load_ushort v{s.vD+c}, v{s.vT0}, s[4:7], 0 offen offset:{128*c}")
            chunk(0, 0)
            chunk(SLOT, 1)
            a(f"s_waitcnt vmcnt({n})")
            for c in range(3): s.loader_gate(c*SLOT, c)
            a("s_waitcnt lgkmcnt(0)\ns_barrier")
            chunk(2*SLOT, 2)
            for G in range(8):
                nout = n if G+2 <= 8 else 0
                a(f"s_waitcnt vmcnt({nout}) lgkmcnt(0)\ns_barrier")
                if G+3 <= 8:
                    s.loader_gate((G%3)*SLOT, G+3)
                    chunk((G%3)*SLOT, G+3)
            a("s_endpgm")
    def gemm2(self, isv, ch, lbl):
        a=self.a; s=self
        ntile = 4 if ch==0 else 3
        nr = 1 + 2*ntile
        def reads(st, b):
            if "nods" in s.dbg: return
            a(f"ds_read_b128 {v(s.vXF[b],4)}, v{s.vXR[st]}")
            for tl in range(ntile):
                for u in range(2):
                    a(f"ds_read_b64_tr_b16 {v(s.vWF[b]+4*tl+2*u,2)}, v{s.vWR[tl]} offset:{(16*st+4*u)*512}")
        def mm(b):
            if "nomm" in s.dbg: return
            for tl in range(ntile):
                X, W = v(s.vXF[b],4), v(s.vWF[b]+4*tl,4)
                A,B = (X,W) if isv else (W,X)
                a(f"v_mfma_f32_32x32x16_bf16 {v(s.vD+16*tl,16)}, {A}, {B}, {v(s.vD+16*tl,16)}")
        a("s_barrier")
        reads(0,0)
        a(f"s_mov_b32 s{s.sC}, 0")
        a(f"{lbl}_loop:")
        for j in range(3):
            for st in range(3):
                reads(st+1, (st+1)&1)
                a(f"s_waitcnt lgkmcnt({nr})")
                mm(st&1)
            a("s_waitcnt lgkmcnt(0)")
            if j == 2:
                a(f"s_cmp_eq_u32 s{s.sC}, 2\ns_cbranch_scc1 {lbl}_last")
            a("s_barrier")
            d = SLOT if j < 2 else -2*SLOT
            for r in s.vWR[:ntile]+s.vXR: a(f"v_add_u32 v{r}, {d & 0xffffffff}, v{r}")
            reads(0, 0)
            if j == 2: a(f"s_add_u32 s{s.sC}, s{s.sC}, 1")
            mm(1)
        a(f"s_branch {lbl}_loop")
        a(f"{lbl}_last:")
        mm(1)
        a("s_nop 15\ns_nop 3")
    def phi_regs(self, regs, tmp):
        a=self.a
        for i,r in enumerate(regs): a(f"v_min_f32 v{tmp+i}, 0, v{r}")
        for i,r in enumerate(regs): a(f"v_mul_f32 v{tmp+i}, {LOG2E}, v{tmp+i}")
        for i,r in enumerate(regs): a(f"v_exp_f32 v{tmp+i}, v{tmp+i}")
        for i,r in enumerate(regs): a(f"v_max_f32 v{r}, 0, v{r}")
        for i,r in enumerate(regs): a(f"v_add_f32 v{r}, v{r}, v{tmp+i}")
        for i,r in enumerate(regs): a(f"v_add_f32 v{r}, {EPS}, v{r}")
    def list_kind(self, sl):
        a=self.a; s=self
        a(f"""
        s_mul_i32 s{s.sT0}, s{s.sJ8}, 12
        s_add_u32 s{s.sT0}, s{s.sT0}, {sl}
        s_lshr_b32 s{s.sKind}, s{s.sT0}, 5
        s_and_b32 s{s.sHead}, s{s.sT0}, 31
        """)
    def q_slice(self, b, sl, lbl):
        a=self.a; s=self; E=s.vE
        L = a.uid(lbl+"_s")
        s.list_kind(sl)
        a(f"""
        s_cmp_eq_u32 s{s.sKind}, 1
        s_cbranch_scc1 {L}_k
        s_cmp_eq_u32 s{s.sKind}, 2
        s_cbranch_scc1 {L}_phi
        """)
        for i in range(8): a(f"v_mul_f32 v{b+i}, {QSC}, v{b+i}")
        a(f"s_mov_b32 s{s.sBase}, {OFF_QBM}\ns_branch {L}_q\n{L}_phi:")
        s.phi_regs([b+i for i in range(8)], E)
        a(f"""
        s_mov_b32 s{s.sBase}, {OFF_PQM}
        {L}_q:
        s_lshl_b32 s{s.sT0}, s{s.sHead}, 6
        s_add_u32 s{s.sT0}, s{s.sT0}, s{s.sT32}
        s_lshl_b32 s{s.sT0}, s{s.sT0}, 10
        s_add_u32 s{s.sBase}, s{s.sBase}, s{s.sT0}
        s_branch {L}_st
        {L}_k:
        v_mul_f32 v{E}, v{b}, v{b}
        """)
        for i in range(1,8): a(f"v_fmac_f32 v{E}, v{b+i}, v{b+i}")
        a(f"v_mov_b32 v{E+2}, v{E}\ns_nop 1\nv_permlane32_swap_b32 v{E}, v{E+2}\ns_nop 1\nv_add_f32 v{E}, v{E}, v{E+2}\ns_nop 1")
        for k in (1,2,4,8):
            a(f"v_max_f32_dpp v{E}, v{E}, v{E} row_ror:{k} row_mask:0xf bank_mask:0xf\ns_nop 1")
        a(f"""
        v_readlane_b32 s{s.sT0}, v{E}, 0
        v_readlane_b32 s{s.sT1}, v{E}, 16
        s_nop 3
        s_max_u32 s{s.sT0}, s{s.sT0}, s{s.sT1}
        v_mov_b32 v{E}, s{s.sT0}
        s_lshl_b32 s{s.sT0}, s{s.sHead}, 6
        s_add_u32 s{s.sT0}, s{s.sT0}, s{s.sT32}
        s_lshl_b32 s{s.sT0}, s{s.sT0}, 3
        s_add_u32 s{s.sT0}, s{s.sT0}, {OFF_KM}
        """)
        s.st(f"buffer_store_dword v{E}, v{s.vT5}, s[12:15], s{s.sT0} offen")
        a(f"""
        s_mul_i32 s{s.sBase}, s{s.sHead}, {HS_KVB}
        s_lshr_b32 s{s.sT0}, s{s.sT32}, 3
        s_mul_i32 s{s.sT0}, s{s.sT0}, {CH}
        s_add_u32 s{s.sBase}, s{s.sBase}, s{s.sT0}
        s_and_b32 s{s.sT0}, s{s.sT32}, 7
        s_lshl_b32 s{s.sT0}, s{s.sT0}, 10
        s_add_u32 s{s.sBase}, s{s.sBase}, s{s.sT0}
        s_add_u32 s{s.sBase}, s{s.sBase}, {OFF_KVB}
        {L}_st:
        """)
        for i in range(4): a(f"v_cvt_pk_bf16_f32 v{b+i}, v{b+2*i}, v{b+2*i+1}")
        s.st(f"buffer_store_dwordx4 {v(b,4)}, v{s.vL16}, s[12:15], s{s.sBase} offen")
    def q_epilogue(self, lbl, ch):
        a=self.a; s=self; E=s.vE; vD=s.vD
        ntile = 4 if ch==0 else 2
        a(f"v_cmp_eq_u32 vcc, 0, v{s.vLane}\nv_mov_b32 v{s.vT5}, {BIG}\ns_nop 0\nv_cndmask_b32 v{s.vT5}, v{s.vT5}, 0, vcc")
        for tl in range(ntile):
            tau = ch*4+tl
            s.q_slice(vD+16*tl, 2*tau, lbl)
            s.q_slice(vD+16*tl+8, 2*((tau+5)%6)+1, lbl)
        if ch == 1:
            b0 = vD+32
            L = a.uid(lbl+"_g")
            a(f"""
            s_cmp_lg_u32 s{s.sJt}, 0
            s_cbranch_scc1 {L}
            v_mul_f32 v{E}, 0xbfb8aa3b, v{b0+12}
            v_exp_f32 v{E}, v{E}
            v_cmp_gt_u32 vcc, 32, v{s.vLane}
            v_mov_b32 v{E+1}, {BIG}
            v_add_f32 v{E}, 1.0, v{E}
            v_rcp_f32 v{E}, v{E}
            v_cndmask_b32 v{E+1}, v{E+1}, v{s.vL4}, vcc
            s_lshl_b32 s{s.sT0}, s{s.sT32}, 7
            s_add_u32 s{s.sT0}, s{s.sT0}, {OFF_G}
            """)
            s.st(f"buffer_store_dword v{E}, v{E+1}, s[12:15], s{s.sT0} offen")
            a(f"{L}:")
            for aa in range(3):
                L = a.uid(lbl+"_r")
                b = b0+4*aa
                s.list_kind(4*aa)
                a(f"""
                s_cmp_eq_u32 s{s.sKind}, 1
                s_cbranch_scc1 {L}_k
                s_cmp_eq_u32 s{s.sKind}, 2
                s_cbranch_scc1 {L}_phi
                """)
                for i in range(4): a(f"v_mul_f32 v{b+i}, {QSC}, v{b+i}")
                a(f"s_mov_b32 s{s.sBase}, {OFF_QBR}\ns_branch {L}_q\n{L}_phi:")
                s.phi_regs([b+i for i in range(4)], E)
                a(f"""
                s_mov_b32 s{s.sBase}, {OFF_PQR}
                {L}_q:
                s_lshl_b32 s{s.sT0}, s{s.sHead}, 6
                s_add_u32 s{s.sT0}, s{s.sT0}, s{s.sT32}
                s_lshl_b32 s{s.sT0}, s{s.sT0}, 7
                s_add_u32 s{s.sBase}, s{s.sBase}, s{s.sT0}
                s_mov_b32 s{s.sT4}, 8192
                v_lshlrev_b32 v{s.vT1}, 14, v{s.vHf}
                v_add_u32 v{s.vT0}, v{s.vL4}, v{s.vT1}
                s_branch {L}_st
                {L}_k:
                v_mul_f32 v{E}, v{b}, v{b}
                v_mul_f32 v{E+1}, v{b+2}, v{b+2}
                v_fmac_f32 v{E}, v{b+1}, v{b+1}
                v_fmac_f32 v{E+1}, v{b+3}, v{b+3}
                s_nop 1
                """)
                for k in (1,2,4,8):
                    a(f"v_max_f32_dpp v{E}, v{E}, v{E} row_ror:{k} row_mask:0xf bank_mask:0xf")
                    a(f"v_max_f32_dpp v{E+1}, v{E+1}, v{E+1} row_ror:{k} row_mask:0xf bank_mask:0xf\ns_nop 0")
                a(f"""
                s_lshl_b32 s{s.sT4}, s{s.sHead}, 6
                s_add_u32 s{s.sT4}, s{s.sT4}, s{s.sT32}
                s_lshl_b32 s{s.sT4}, s{s.sT4}, 3
                s_add_u32 s{s.sT4}, s{s.sT4}, {OFF_KM+4}
                """)
                for (rg, l0, l1, dh) in ((E,0,16,0),(E+1,0,16,1),(E,32,48,2),(E+1,32,48,3)):
                    a(f"""
                    v_readlane_b32 s{s.sT0}, v{rg}, {l0}
                    v_readlane_b32 s{s.sT1}, v{rg}, {l1}
                    s_nop 3
                    s_max_u32 s{s.sT0}, s{s.sT0}, s{s.sT1}
                    v_mov_b32 v{E+2+dh}, s{s.sT0}
                    s_add_u32 s{s.sT1}, s{s.sT4}, {dh*512}
                    """)
                    s.st(f"buffer_store_dword v{E+2+dh}, v{s.vT5}, s[12:15], s{s.sT1} offen")
                a(f"""
                s_mul_i32 s{s.sBase}, s{s.sHead}, {HS_KVB}
                s_lshr_b32 s{s.sT0}, s{s.sT32}, 3
                s_mul_i32 s{s.sT0}, s{s.sT0}, {CH}
                s_add_u32 s{s.sBase}, s{s.sBase}, s{s.sT0}
                s_and_b32 s{s.sT0}, s{s.sT32}, 7
                s_lshl_b32 s{s.sT0}, s{s.sT0}, 7
                s_add_u32 s{s.sBase}, s{s.sBase}, s{s.sT0}
                s_add_u32 s{s.sBase}, s{s.sBase}, {OFF_KVB+8192}
                s_mov_b32 s{s.sT4}, {HS_KVB}
                v_mul_u32_u24 v{s.vT1}, {2*HS_KVB}, v{s.vHf}
                v_add_u32 v{s.vT0}, v{s.vL4}, v{s.vT1}
                {L}_st:
                v_cvt_pk_bf16_f32 v{b}, v{b}, v{b+1}
                v_cvt_pk_bf16_f32 v{b+1}, v{b+2}, v{b+3}
                s_add_u32 s{s.sT4}, s{s.sT4}, s{s.sBase}
                """)
                s.st(f"buffer_store_dword v{b}, v{s.vT0}, s[12:15], s{s.sBase} offen")
                s.st(f"buffer_store_dword v{b+1}, v{s.vT0}, s[12:15], s{s.sT4} offen")
    def lane_off(self, vL, vOut, vKindOut):
        a=self.a; s=self
        a(f"""
        v_lshrrev_b32 v{vKindOut}, 5, v{vL}
        v_and_b32 v{s.vT3}, 31, v{vL}
        s_lshr_b32 s{s.sT0}, s{s.sT32}, 3
        s_mul_i32 s{s.sT0}, s{s.sT0}, {CH}
        s_and_b32 s{s.sT1}, s{s.sT32}, 7
        s_mul_i32 s{s.sT1}, s{s.sT1}, 1280
        s_add_u32 s{s.sT0}, s{s.sT0}, s{s.sT1}
        s_add_u32 s{s.sT0}, s{s.sT0}, {OFF_KVB+9216}
        s_mov_b32 s{s.sT1}, {HS_KVB}
        v_mul_lo_u32 v{vOut}, v{s.vT3}, s{s.sT1}
        v_add_u32 v{vOut}, s{s.sT0}, v{vOut}
        s_mul_i32 s{s.sT0}, s{s.sT32}, 1280
        v_mul_u32_u24 v{s.vT3}, {HS_V}, v{s.vT3}
        v_add_u32 v{s.vT3}, s{s.sT0}, v{s.vT3}
        v_add_u32 v{s.vT4}, {OFF_VA}, v{s.vT3}
        v_add_u32 v{s.vT3}, {OFF_PK}, v{s.vT3}
        v_cmp_eq_u32 vcc, 1, v{vKindOut}
        s_nop 1
        v_cndmask_b32 v{vOut}, v{vOut}, v{s.vT3}, vcc
        v_cmp_eq_u32 vcc, 2, v{vKindOut}
        s_nop 1
        v_cndmask_b32 v{vOut}, v{vOut}, v{s.vT4}, vcc
        v_mul_u32_u24 v{s.vT3}, 320, v{s.vHf}
        v_add_u32 v{vOut}, v{vOut}, v{s.vT3}
        """)
    def v_tile(self, b, lbl):
        a=self.a; s=self; E=s.vE
        L = a.uid(lbl+"_v")
        a(f"v_cmp_eq_u32 vcc, 1, v{s.vT2}\ns_nop 3\ns_cmp_eq_u64 vcc, 0\ns_cbranch_scc1 {L}")
        for half in range(2):
            regs = [b+8*half+i for i in range(8)]
            for i,r in enumerate(regs): a(f"v_mov_b32 v{E+8+i}, v{r}")
            s.phi_regs([E+8+i for i in range(8)], E)
            for i,r in enumerate(regs): a(f"v_cndmask_b32 v{r}, v{r}, v{E+8+i}, vcc")
        a(f"{L}:")
        for hs in range(2):
            for i in range(4): a(f"v_cvt_pk_bf16_f32 v{b+8*hs+i}, v{b+8*hs+2*i}, v{b+8*hs+2*i+1}")
        s.st(f"buffer_store_dwordx4 {v(b,4)}, v{s.vT1}, s[12:15], 0 offen")
        s.st(f"buffer_store_dwordx4 {v(b+8,4)}, v{s.vT1}, s[12:15], 0 offen offset:640")
    def v_epilogue(self, lbl, ch):
        a=self.a; s=self; E=s.vE; vD=s.vD
        ntile = 4 if ch==0 else 2
        for tl in range(ntile):
            tau = ch*4+tl
            a(f"""
            s_mul_i32 s{s.sT2}, s{s.sJ8}, 12
            s_add_u32 s{s.sT3}, s{s.sT2}, {2*tau}
            s_add_u32 s{s.sT2}, s{s.sT2}, {2*((tau+5)%6)+1}
            v_cmp_gt_u32 vcc, 16, v{s.vTok}
            v_mov_b32 v{s.vT0}, s{s.sT2}
            v_mov_b32 v{s.vT1}, s{s.sT3}
            v_cndmask_b32 v{s.vT0}, v{s.vT0}, v{s.vT1}, vcc
            """)
            s.lane_off(s.vT0, s.vT1, s.vT2)
            a(f"""
            v_and_b32 v{s.vT3}, 15, v{s.vTok}
            v_lshlrev_b32 v{s.vT3}, 4, v{s.vT3}
            v_add_u32 v{s.vT1}, v{s.vT1}, v{s.vT3}
            """)
            s.v_tile(vD+16*tl, lbl)
        if ch == 1:
            b0 = vD+32
            a(f"""
            s_mul_i32 s{s.sT2}, s{s.sJ8}, 12
            v_lshrrev_b32 v{s.vT0}, 2, v{s.vTok}
            v_lshlrev_b32 v{s.vT0}, 1, v{s.vT0}
            v_bfe_u32 v{s.vT1}, v{s.vTok}, 1, 1
            v_add_u32 v{s.vT0}, v{s.vT0}, v{s.vT1}
            v_add_u32 v{s.vT0}, s{s.sT2}, v{s.vT0}
            """)
            s.lane_off(s.vT0, s.vT1, s.vT2)
            a(f"""
            v_and_b32 v{s.vT3}, 1, v{s.vTok}
            v_lshlrev_b32 v{s.vT3}, 4, v{s.vT3}
            v_add_u32 v{s.vT3}, 256, v{s.vT3}
            v_add_u32 v{s.vT1}, v{s.vT1}, v{s.vT3}
            v_cmp_gt_u32 vcc, 24, v{s.vTok}
            v_mov_b32 v{s.vT3}, {BIG}
            s_nop 0
            v_cndmask_b32 v{s.vT1}, v{s.vT3}, v{s.vT1}, vcc
            """)
            s.v_tile(b0, lbl)
            a(f"""
            s_mul_i32 s{s.sT2}, s{s.sJ8}, 12
            v_add_u32 v{s.vT0}, s{s.sT2}, v{s.vTok}
            """)
            s.lane_off(s.vT0, s.vT1, s.vT2)
            a(f"""
            v_add_u32 v{s.vT1}, {18*16}, v{s.vT1}
            v_cmp_gt_u32 vcc, 12, v{s.vTok}
            v_cmp_ne_u32 s[{s.sT0}:{s.sT0+1}], 1, v{s.vT2}
            v_mov_b32 v{s.vT3}, {BIG}
            s_nop 1
            s_and_b64 vcc, vcc, s[{s.sT0}:{s.sT0+1}]
            v_cndmask_b32 v{s.vT1}, v{s.vT3}, v{s.vT1}, vcc
            v_mov_b32 v{E}, 0x3f803f80
            v_mov_b32 v{E+1}, 0x3f803f80
            v_mov_b32 v{E+2}, 0x3f803f80
            v_mov_b32 v{E+3}, 0x3f803f80
            """)
            s.st(f"buffer_store_dwordx4 {v(E,4)}, v{s.vT1}, s[12:15], 0 offen")
            s.st(f"buffer_store_dwordx4 {v(E,4)}, v{s.vT1}, s[12:15], 0 offen offset:640")
def gen_k1d(name="k1_kernel", stamps=False, sc="", dbg=""):
    a = Asm()
    p = QKV(a, name, sc); p.dbg = dbg
    def stamp(i):
        if stamps: a(f"s_memtime s[{50+2*i}:{51+2*i}]")
    a(f"""
    s_cmp_ge_u32 s2, 256
    s_cbranch_scc1 {name}_end
    s_load_dwordx2 s[8:9], s[0:1], 0
    s_load_dwordx2 s[16:17], s[0:1], 8
    s_load_dwordx2 s[18:19], s[0:1], 32
    s_load_dwordx2 s[4:5], s[0:1], 48
    s_load_dwordx2 s[12:13], s[0:1], 72
    s_memtime s[50:51]
    s_memrealtime s[66:67]
    s_mov_b32 s10, {S*D*2}
    s_mov_b32 s11, 0x00020000
    s_mov_b32 s14, {WS_END}
    s_mov_b32 s15, 0x00020000
    s_mov_b32 s6, 1152
    s_mov_b32 s7, 0x00020000
    """)
    p.setup()
    a(f"""
    s_mov_b32 s{p.sSlot}, 0
    s_mov_b32 s{p.sSlotM}, s{p.sM}
    s_mov_b32 s{p.sXoff}, 0
    s_mov_b32 s{p.sCn}, 0
    s_mov_b32 s{p.sDm}, 0
    s_waitcnt lgkmcnt(0)
    """)
    p.dma('x0',0,True); p.dma('x1',0,True)
    a(f"""
    s_lshl_b32 s{p.sT0}, s{p.sW}, 7
    v_lshlrev_b32 v{p.vT0}, 1, v{p.vLane}
    buffer_load_ushort v{p.vGW}, v{p.vT0}, s[4:7], s{p.sT0} offen
    buffer_load_ushort v{p.vGA}, v{p.vT0}, s[4:7], 0 offen offset:1024
    """)
    p.setup_w()
    for it in ('w0','w1','w2','w3'): p.dma(it,0,True)
    p.dma_advance()
    for it in ('x0','w0','w1','x1','w2','w3'): p.dma(it,SLOT,True)
    p.dma_advance()
    p.dma('x0',2*SLOT,True); p.dma('w0',2*SLOT,True)
    p.read_addrs()
    for i in range(64): a(f"v_mov_b32 v{p.vD+i}, 0")
    a("s_waitcnt vmcnt(12)")
    for c in range(3):
        L = a.uid("gw")
        a(f"s_cmp_eq_u32 s{p.sW}, {c}\ns_cbranch_scc0 {L}\nv_add_u32 v{p.vT0}, {c*SLOT}, v{p.vGD}\nds_write_b16 v{p.vT0}, v{p.vGW}\n{L}:")
    a(f"""
    s_lshl_b32 s{p.sT0}, s{p.sIsV}, 1
    s_add_u32 s{p.sT0}, s{p.sT0}, s{p.sCh}
    s_cmp_eq_u32 s{p.sT0}, 1
    s_cbranch_scc1 {name}_v01
    s_cmp_eq_u32 s{p.sT0}, 2
    s_cbranch_scc1 {name}_v10
    s_cmp_eq_u32 s{p.sT0}, 3
    s_cbranch_scc1 {name}_v11
    """)
    for (isv,ch) in ((0,0),(0,1),(1,0),(1,1)):
        if (isv,ch) != (0,0): a(f"{name}_v{isv}{ch}:")
        stamp(1)
        p.gemm(isv, ch, f"{name}_g{isv}{ch}")
        stamp(2)
        (p.v_epilogue if isv else p.q_epilogue)(f"{name}_e{isv}{ch}", ch)
        stamp(3); stamp(4)
        if stamps:
            a("s_waitcnt vmcnt(0)")
            stamp(5)
            a("s_memrealtime s[68:69]\ns_waitcnt lgkmcnt(0)")
            a("s_lshl_b32 s28, s2, 3\ns_add_u32 s28, s28, s24\ns_lshl_b32 s28, s28, 5\ns_add_u32 s28, s28, 0x2000000\ns_mov_b32 s14, 0x4000000")
            for i in range(1,6): a(f"s_sub_u32 s{50+2*i}, s{50+2*i}, s50")
            a("v_mov_b32 v2, s66\nv_mov_b32 v3, s52\nv_mov_b32 v4, s54\nv_mov_b32 v5, s56\nv_mov_b32 v6, s58\nv_mov_b32 v7, s68\nv_mov_b32 v8, s60\nv_mov_b32 v9, 0\nv_mov_b32 v10, 0")
            a("buffer_store_dwordx4 v[2:5], v10, s[12:15], s28 offen\nbuffer_store_dwordx4 v[6:9], v10, s[12:15], s28 offen offset:16")
        a("s_endpgm")
    a(f"{name}_end:\ns_endpgm")
    return kernel_head(name) + a.text() + kernel_desc(name, p.NV)
def gen_k1e(name="k1_kernel", stamps=False, sc="", dbg=""):
    a = Asm()
    p = QKV(a, name, sc); p.dbg = dbg
    def stamp(i):
        if stamps: a(f"s_memtime s[{50+2*i}:{51+2*i}]")
    a(f"""
    s_cmp_ge_u32 s2, 256
    s_cbranch_scc1 {name}_end
    s_load_dwordx2 s[8:9], s[0:1], 0
    s_load_dwordx2 s[16:17], s[0:1], 8
    s_load_dwordx2 s[18:19], s[0:1], 32
    s_load_dwordx2 s[4:5], s[0:1], 48
    s_load_dwordx2 s[12:13], s[0:1], 72
    s_memtime s[50:51]
    s_memrealtime s[66:67]
    s_mov_b32 s10, {S*D*2}
    s_mov_b32 s11, 0x00020000
    s_mov_b32 s14, {WS_END}
    s_mov_b32 s15, 0x00020000
    s_mov_b32 s6, 1152
    s_mov_b32 s7, 0x00020000
    """)
    p.setup()
    a(f"s_cmp_lt_u32 s{p.sW}, 8\ns_cbranch_scc1 {name}_comp")
    a(f"s_sub_u32 s{p.sW}, s{p.sW}, 8")
    a(f"""
    v_lshrrev_b32 v{p.vT0}, 3, v{p.vLane}
    s_lshl_b32 s{p.sT0}, s{p.sW}, 3
    v_add_u32 v{p.vT0}, s{p.sT0}, v{p.vT0}
    v_lshrrev_b32 v{p.vT1}, 1, v{p.vT0}
    v_and_b32 v{p.vT1}, 7, v{p.vT1}
    v_and_b32 v{p.vT2}, 7, v{p.vLane}
    v_xor_b32 v{p.vT1}, v{p.vT1}, v{p.vT2}
    v_lshlrev_b32 v{p.vT1}, 4, v{p.vT1}
    s_lshl_b32 s{p.sT0}, s{p.sR}, 7
    v_add_u32 v{p.vT0}, s{p.sT0}, v{p.vT0}
    v_mul_u32_u24 v{p.vT0}, 1152, v{p.vT0}
    v_add_u32 v{p.vXG}, v{p.vT0}, v{p.vT1}
    s_lshl_b32 s{p.sM}, s{p.sW}, 10
    s_mov_b32 s{p.sXoff}, 0
    s_waitcnt lgkmcnt(0)
    """)
    p.loader(name+"_ld")
    a(f"{name}_comp:\ns_waitcnt lgkmcnt(0)")
    p.read_addrs()
    for i in range(64): a(f"v_mov_b32 v{p.vD+i}, 0")
    a(f"""
    s_lshl_b32 s{p.sT0}, s{p.sIsV}, 1
    s_add_u32 s{p.sT0}, s{p.sT0}, s{p.sCh}
    s_cmp_eq_u32 s{p.sT0}, 1
    s_cbranch_scc1 {name}_v01
    s_cmp_eq_u32 s{p.sT0}, 2
    s_cbranch_scc1 {name}_v10
    s_cmp_eq_u32 s{p.sT0}, 3
    s_cbranch_scc1 {name}_v11
    """)
    for (isv,ch) in ((0,0),(0,1),(1,0),(1,1)):
        if (isv,ch) != (0,0): a(f"{name}_v{isv}{ch}:")
        stamp(1)
        p.gemm2(isv, ch, f"{name}_g{isv}{ch}")
        stamp(2)
        (p.v_epilogue if isv else p.q_epilogue)(f"{name}_e{isv}{ch}", ch)
        stamp(3); stamp(4)
        if stamps:
            a("s_waitcnt vmcnt(0)")
            stamp(5)
            a("s_memrealtime s[68:69]\ns_waitcnt lgkmcnt(0)")
            a("s_lshl_b32 s28, s2, 3\ns_add_u32 s28, s28, s24\ns_lshl_b32 s28, s28, 5\ns_add_u32 s28, s28, 0x2000000\ns_mov_b32 s14, 0x4000000")
            for i in range(1,6): a(f"s_sub_u32 s{50+2*i}, s{50+2*i}, s50")
            a("v_mov_b32 v2, s66\nv_mov_b32 v3, s52\nv_mov_b32 v4, s54\nv_mov_b32 v5, s56\nv_mov_b32 v6, s58\nv_mov_b32 v7, s68\nv_mov_b32 v8, s60\nv_mov_b32 v9, 0\nv_mov_b32 v10, 0")
            a("buffer_store_dwordx4 v[2:5], v10, s[12:15], s28 offen\nbuffer_store_dwordx4 v[6:9], v10, s[12:15], s28 offen offset:16")
        a("s_endpgm")
    a(f"{name}_end:\ns_endpgm")
    return kernel_head(name) + a.text() + kernel_desc(name, p.NV)
```
